```python
import torch

def _softmax(x, axis=-1):
    return torch.softmax(x, dim=axis)
def _gelu(x):
    return torch.nn.functional.gelu(x, approximate="tanh")
def _silu(x):
    return torch.nn.functional.silu(x)
def _sigmoid(x):
    return torch.sigmoid(x)
def _layernorm(x, axis=-1, eps=1e-5):
    m = x.mean(dim=axis, keepdim=True)
    v = x.var(dim=axis, keepdim=True, unbiased=False)
    return (x - m) / torch.sqrt(v + eps)
def _scatter_add(tgt, idx, src, axis=0):
    return tgt.clone().index_add_(axis, idx, src)
def _segment_sum(src, seg, n):
    out = torch.zeros((n,) + src.shape[1:], dtype=src.dtype)
    return out.index_add_(0, seg, src)
def _pad(x, pw):
    flat = tuple(v for pair in reversed(pw) for v in pair)
    return torch.nn.functional.pad(x, flat)

kernel_name = 'sequential_preLN__sliding_local_dilated__dense_activation_relu__prompt'

def setup_inputs():

    _w = (lambda a: (lambda t: t.to(torch.bfloat16) if t.is_floating_point() else t)(torch.as_tensor(a)))
    def _A_setup():
        B, S, D = 1, 2048, 512
        return {
            "x": _w((lambda *s: torch.randn(*s, dtype=torch.bfloat16) * 0.05)(B, S, D)),
            "wqkv": _w((lambda *s: torch.randn(*s, dtype=torch.bfloat16) * 0.05)(D, 3 * D)),
            "wo": _w((lambda *s: torch.randn(*s, dtype=torch.bfloat16) * 0.05)(D, D)),
        }
    _A_in = _A_setup()

    def _B_setup():
        B, S, D, Dff = 1, 2048, 512, 1376
        return {
            "x": _w((lambda *s: torch.randn(*s, dtype=torch.bfloat16) * 0.05)(B, S, D)),
            "w1": _w((lambda *s: torch.randn(*s, dtype=torch.bfloat16) * 0.05)(D, Dff)),
            "w2": _w((lambda *s: torch.randn(*s, dtype=torch.bfloat16) * 0.05)(Dff, D)),
        }
    _B_in = _B_setup()

    return {
        "A_x": _A_in["x"],
        "A_wqkv": _A_in["wqkv"],
        "A_wo": _A_in["wo"],
        "B_x": _B_in["x"],
        "B_w1": _B_in["w1"],
        "B_w2": _B_in["w2"],
    }

def reference(A_x, A_wqkv, A_wo, B_x, B_w1, B_w2):
    def _A_ref(x, wqkv, wo):
        B, S, D = x.shape
        H = 32; Dh = D // H
        W, dil = 8, 2
        qkv = (lambda x, *d: x.permute(*d))((x @ wqkv).reshape(B, S, 3, H, Dh), 2, 0, 3, 1, 4)
        q, k, v = qkv[0], qkv[1], qkv[2]
        scale = Dh ** -0.5
        pos = torch.arange(S)
        off = torch.arange(W) * dil
        idx = pos[:, None] - off[None, :]
        mask = idx >= 0
        idx_c = torch.where(mask, idx, 0).reshape(-1)
        kg = k[:, :, idx_c, :].reshape(B, H, S, W, Dh)
        vg = v[:, :, idx_c, :].reshape(B, H, S, W, Dh)
        logits = torch.einsum("bhsd,bhswd->bhsw", q, kg) * scale
        logits = torch.where(mask[None, None, :, :], logits, -1e9)
        attn = _softmax(logits, axis=-1)
        o = torch.einsum("bhsw,bhswd->bhsd", attn, vg)
        return (lambda x, *d: x.permute(*d))(o, 0, 2, 1, 3).reshape(B, S, D) @ wo

    def _B_ref(x, w1, w2):
        h = torch.einsum("bsd,df->bsf", x, w1)
        zero = torch.zeros_like(h)
        h = torch.maximum(h, zero)
        return torch.einsum("bsf,fd->bsd", h, w2)

    x = A_x
    h = x + _A_ref(_layernorm(x, axis=-1), A_wqkv, A_wo)
    h2 = h + _B_ref(_layernorm(h, axis=-1), B_w1, B_w2)
    return h2
```

```python
import re

_REG = re.compile(r'\b([vas])\[(\d+):(\d+)\]|\b([vas])(\d+)\b|\b(vcc|exec|m0)\b')
TRANS = ('v_exp_', 'v_rcp_', 'v_rsq_', 'v_log_', 'v_sqrt_', 'v_sin_', 'v_cos_')
SALU_NODST = ('s_cmp', 's_waitcnt', 's_barrier', 's_branch', 's_cbranch', 's_nop', 's_endpgm',
              's_setprio', 's_bitcmp', 's_sleep')


def regs_of(txt):
    out = []
    for m in _REG.finditer(txt):
        if m.group(1):
            out += [(m.group(1), i) for i in range(int(m.group(2)), int(m.group(3)) + 1)]
        elif m.group(4):
            out.append((m.group(4), int(m.group(5))))
        else:
            out.append((m.group(6), 0))
    return out


def split_ops(s):
    ops, depth, cur = [], 0, ''
    for ch in s:
        if ch == '[':
            depth += 1
        elif ch == ']':
            depth -= 1
        if ch == ',' and depth == 0:
            ops.append(cur.strip())
            cur = ''
        else:
            cur += ch
    if cur.strip():
        ops.append(cur.strip())
    return ops


class I:
    __slots__ = ('txt', 'mn', 'kind', 'wr', 'rd', 'srcA', 'srcC', 'dpp', 'trans', 'opsel', 'wide_store', 'states')


def parse(txt):
    i = I()
    i.txt = txt
    parts = txt.split(None, 1)
    mn = parts[0]
    rest = parts[1] if len(parts) > 1 else ''
    i.mn = mn
    ops = split_ops(rest)
    if ops:
        last = ops[-1].split(None, 1)
        mods = last[1] if len(last) > 1 else ''
        ops[-1] = last[0]
    else:
        mods = ''
    i.dpp = ('row_' in mods) or ('quad_perm' in mods) or ('wave_' in mods)
    i.trans = mn.startswith(TRANS)
    i.opsel = False
    i.wide_store = False
    i.srcA = []
    i.srcC = []
    i.states = 1
    wr, rd = [], []
    if mn.startswith('v_mfma'):
        i.kind = 'mfma'
        wr = regs_of(ops[0])
        i.srcA = regs_of(ops[1]) + regs_of(ops[2])
        i.srcC = regs_of(ops[3])
        rd = i.srcA + i.srcC
    elif mn.startswith('v_'):
        i.kind = 'valu'
        wr = regs_of(ops[0])
        for o in ops[1:]:
            rd += regs_of(o)
        if mn.startswith(('v_dot2c', 'v_fmac', 'v_mac', 'v_pk_fmac')):
            i.srcC = list(wr)
            i.srcA = list(rd)
            rd += wr
        elif mn.startswith('v_dot'):
            i.srcA = regs_of(ops[1]) + regs_of(ops[2])
            i.srcC = regs_of(ops[3])
        if mn.startswith('v_permlane') and 'swap' in mn:
            wr = wr + regs_of(ops[1])
            rd += regs_of(ops[0])
        if i.dpp:
            rd += wr
        if mn.startswith('v_cmpx'):
            wr.append(('exec', 0))
        if mn.startswith(('v_add_co', 'v_sub_co', 'v_addc', 'v_subb')):
            wr += regs_of(ops[1])
    elif mn.startswith('buffer_load') or mn.startswith('global_load'):
        if re.search(r'\blds\b', mods):
            i.kind = 'dma'
            for o in ops:
                rd += regs_of(o)
            rd.append(('m0', 0))
        else:
            i.kind = 'vload'
            wr = regs_of(ops[0])
            for o in ops[1:]:
                rd += regs_of(o)
    elif mn.startswith('buffer_store') or mn.startswith('global_store') or mn.startswith('buffer_atomic'):
        i.kind = 'vstore'
        for o in ops:
            rd += regs_of(o)
        i.wide_store = ('x3' in mn) or ('x4' in mn)
        i.srcA = regs_of(ops[0]) if mn.startswith('buffer') else regs_of(ops[1])
    elif mn.startswith('ds_read'):
        i.kind = 'dsread'
        wr = regs_of(ops[0])
        for o in ops[1:]:
            rd += regs_of(o)
    elif mn.startswith('ds_write'):
        i.kind = 'dswrite'
        for o in ops:
            rd += regs_of(o)
    elif mn.startswith('s_load') or mn.startswith('s_mem'):
        i.kind = 'smem'
        wr = regs_of(ops[0])
        for o in ops[1:]:
            rd += regs_of(o)
    elif mn.startswith('s_'):
        i.kind = 'salu'
        if mn.startswith(SALU_NODST):
            for o in ops:
                rd += regs_of(o)
            if mn == 's_nop':
                i.states = int(ops[0]) + 1
        else:
            wr = regs_of(ops[0])
            for o in ops[1:]:
                rd += regs_of(o)
            if 'saveexec' in mn:
                wr.append(('exec', 0))
    else:
        raise ValueError('unknown instruction ' + txt)
    i.wr = set(wr)
    i.rd = set(rd)
    i.srcA = set(i.srcA)
    i.srcC = set(i.srcC)
    return i


class Gen:
    def __init__(self):
        self.out = []
        self.hist = []
        self.vm_n = 0
        self.vm_done = 0
        self.lg_n = 0
        self.lg_done = 0
        self.pend = {}
        self.nops = 0
        self.ninstr = 0

    def raw(self, s):
        self.out.append(s)

    def comment(self, s):
        self.out.append('    ; ' + s)

    def label(self, name):
        self._push(parse('s_nop 7'))
        self.out.append('    s_nop 7')
        self.out.append(name + ':')

    def _push(self, ins):
        self.hist.append(ins)
        if len(self.hist) > 24:
            self.hist.pop(0)
        self.ninstr += 1

    def wait_vm(self, seq):
        if seq <= self.vm_done:
            return
        n = min(self.vm_n - seq, 63)
        self._emit_wait(vm=n)
        self.vm_done = max(self.vm_done, self.vm_n - n)

    def wait_lg(self, seq):
        if seq <= self.lg_done:
            return
        n = min(self.lg_n - seq, 15)
        self._emit_wait(lg=n)
        self.lg_done = max(self.lg_done, self.lg_n - n)

    def wait_all_lg(self):
        self.wait_lg(self.lg_n)

    def wait_all_vm(self):
        self.wait_vm(self.vm_n)

    def _emit_wait(self, vm=None, lg=None):
        t = 's_waitcnt'
        if vm is not None:
            t += ' vmcnt(%d)' % vm
        if lg is not None:
            t += ' lgkmcnt(%d)' % lg
        self.out.append('    ' + t)
        self._push(parse('s_waitcnt 0'))

    def _need(self, ins):
        need = 0
        dist = 0
        vreg = lambda s: {r for r in s if r[0] in 'va'}
        sreg = lambda s: {r for r in s if r[0] in ('s', 'vcc')}
        is_vmem = ins.kind in ('vload', 'vstore', 'dma')
        is_ds = ins.kind in ('dsread', 'dswrite')
        for p in reversed(self.hist):
            req = 0
            if p.kind == 'valu':
                pw = vreg(p.wr)
                if ins.kind == 'mfma' and pw & ins.rd:
                    req = max(req, 2)
                if ins.kind == 'valu':
                    if ins.dpp and pw & ins.rd:
                        req = max(req, 2)
                    if ins.mn.startswith('v_permlane') and pw & ins.rd:
                        req = max(req, 2)
                    if ins.mn.startswith(('v_readfirstlane', 'v_readlane')) and pw & ins.rd:
                        req = max(req, 1)
                    if p.trans and pw & ins.rd:
                        req = max(req, 1)
                    if sreg(p.wr) & ins.rd:
                        req = max(req, 4 if ins.mn.startswith(('v_readlane', 'v_writelane')) else 2)
                    if ('exec', 0) in p.wr and ins.dpp:
                        req = max(req, 5)
                if p.mn.startswith('v_dot'):
                    if ins.mn == p.mn:
                        if pw & ins.srcA:
                            req = max(req, 3)
                    elif pw & (ins.rd | ins.wr):
                        req = max(req, 3)
                if p.trans and (is_vmem or is_ds or ins.kind == 'mfma') and pw & ins.rd:
                    req = max(req, 2)
                if is_vmem and sreg(p.wr) & ins.rd:
                    req = max(req, 5)
                if ins.kind == 'salu' and sreg(p.wr) & ins.rd:
                    req = max(req, 1)
                if ('exec', 0) in p.wr and ins.kind == 'mfma':
                    req = max(req, 4)
            elif p.kind == 'mfma':
                if ins.kind == 'mfma':
                    if p.wr & ins.srcA:
                        req = max(req, 8)
                    if p.wr & ins.srcC and p.wr != ins.srcC:
                        req = max(req, 8)
                    if (p.wr & ins.wr) and not (p.wr == ins.srcC):
                        req = max(req, 8)
                elif ins.kind in ('valu', 'vload', 'vstore', 'dma', 'dsread', 'dswrite'):
                    if p.wr & (ins.rd | ins.wr):
                        req = max(req, 8)
                    if ins.kind == 'valu' and p.srcC & ins.wr:
                        req = max(req, 3)
            elif p.kind == 'salu':
                if ('m0', 0) in p.wr and ins.kind == 'dma':
                    req = max(req, 1)
            elif p.kind == 'vstore':
                if p.wide_store and ins.kind == 'valu' and p.srcA & ins.wr:
                    req = max(req, 2)
            need = max(need, req - dist)
            dist += p.states
            if dist >= 10:
                break
        return need

    def op(self, txt):
        ins = parse(txt)
        vm_need = 0
        lg_need = 0
        for r in ins.rd | ins.wr:
            pd = self.pend.get(r)
            if pd:
                if pd[0] == 'vm':
                    vm_need = max(vm_need, pd[1])
                else:
                    lg_need = max(lg_need, pd[1])
        if vm_need > self.vm_done:
            self.wait_vm(vm_need)
        if lg_need > self.lg_done:
            self.wait_lg(lg_need)
        need = self._need(ins)
        while need > 0:
            k = min(need, 8)
            self.out.append('    s_nop %d' % (k - 1))
            self._push(parse('s_nop %d' % (k - 1)))
            self.nops += 1
            need -= k
        self.out.append('    ' + txt)
        self._push(ins)
        seq = None
        if ins.kind in ('vload', 'vstore', 'dma'):
            self.vm_n += 1
            seq = self.vm_n
            for r in ins.wr:
                self.pend[r] = ('vm', seq)
        elif ins.kind in ('dsread', 'dswrite'):
            self.lg_n += 1
            seq = self.lg_n
            for r in ins.wr:
                self.pend[r] = ('lg', seq)
        else:
            for r in ins.wr:
                self.pend.pop(r, None)
        return seq

    def text(self):
        return '\n'.join(self.out) + '\n'
```

```python
import sys
from asmgen import Gen

NAME = 'sequential_preLN__sliding_local_dilated__dense_activation_relu__prompt_kernel'
STAMPS = '--stamps' in sys.argv
OUT = 'cdna_kernels/sequential_preLN__sliding_local_dilated__dense_activation_relu__prompt.s'
for a in sys.argv[1:]:
    if a.startswith('--out='):
        OUT = a[6:]
CFG = {}
for a in sys.argv[1:]:
    if a.startswith('-D'):
        k, v = a[2:].split('=')
        CFG[k] = int(v)


def cfg(k, d):
    return CFG.get(k, d)


g = Gen()
op = g.op

RING0 = 81920
RUNITS = 19
RSTRIDE = RUNITS * 1024
ST = RING0 + 4 * RSTRIDE
LDS_TOTAL = ST + 640

S_X, S_WQ, S_WO, S_W1, S_W2, S_OUT, S_DBG, S_O, S_H, S_A = [24 + 4 * i for i in range(10)]
sW, sC, sJ, sR = 64, 65, 66, 67
sXg = [None, 68, 69, 70, 71]
sT = [72, 73, 74, 75]
sTA = [76, 77, 78, 79]
sRing, sOff, sFlag, sSpin, sT0, sT1, sOnes, sPLo, sPHi, sWoB, sW2B, sT2 = range(80, 92)
sFlagB = 92
sC98 = 93
sDbg = 3
S_TS = 96


def srd(b):
    return 's[%d:%d]' % (b, b + 3)


def vr(b, n=1):
    return 'v%d' % b if n == 1 else 'v[%d:%d]' % (b, b + n - 1)


def ar(b, n=1):
    return 'a%d' % b if n == 1 else 'a[%d:%d]' % (b, b + n - 1)


vL16, vM, vG, vXo, vXTw = 1, 2, 3, 4, 5
vXr = [6, 7, 8, 9]
vXr4 = [10, 11, 12, 13]
vDq = [14, 15, 16]
vD1 = [17, 18, 19]
vD2 = [20, 21, 22, 23]
vTr96, vTr96b, vTrA, vTrB = 24, 25, 26, 27
vOf, vStR, vStW, vHs = 28, 29, 30, 31
vAf = 14
vAs = 15
vPoll = 10
vFlag = 12
vLane4 = 13
HT = 238
SA = 246

stamp_regs = [4, 6, 8, 10, 12, 14, 16, 18, 20, 22, 94, 100, 0]
stamp_n = [0]


def stamp(name):
    if not STAMPS:
        return
    r = stamp_regs[stamp_n[0]]
    stamp_n[0] += 1
    g.comment('stamp ' + name)
    op('s_memtime s[%d:%d]' % (r, r + 1))


class Stream:
    def __init__(self):
        self.slots = []
        for ks in range(16):
            self.slots.append(dict(k='q', i=ks, u=3))
        for ks in range(4):
            self.slots.append(dict(k='o', i=ks, u=4))
        for ks in range(16):
            self.slots.append(dict(k='1', i=ks, u=3))
        for t in range(11):
            self.slots.append(dict(k='2', i=t, u=4))
        self.ni = 0
        self.nc = 0
        self.busy = [False] * RUNITS
        self.freeseq = [0] * RUNITS
        self.head = 0

    def find(self, u):
        for st in list(range(self.head, RUNITS)) + list(range(0, self.head)):
            if st + u <= RUNITS and not any(self.busy[st:st + u]):
                return st
        return None

    def can_issue(self):
        return self.ni < len(self.slots) and self.find(self.slots[self.ni]['u']) is not None

    def issue_ops(self):
        s = self.slots[self.ni]
        st = self.find(s['u'])
        assert st is not None
        self.ni += 1
        for x in range(st, st + s['u']):
            self.busy[x] = True
        self.head = (st + s['u']) % RUNITS
        s['unit'] = st
        need = max(self.freeseq[st:st + s['u']])
        k, i = s['k'], s['i']
        ops = []

        def setup():
            g.wait_lg(need)
            op('s_add_u32 m0, s%d, %d' % (sRing, st * 1024))
            if k == 'q':
                op('s_mov_b32 s%d, %d' % (sOff, i * 98304))
            elif k == '1':
                op('s_mov_b32 s%d, %d' % (sOff, i * 88064))
            elif k == 'o':
                op('s_add_u32 s%d, s%d, %d' % (sOff, sWoB, i * 32768))
            else:
                op('s_add_u32 s%d, s%d, %d' % (sOff, sW2B, i * 32768))
        ops.append(setup)
        va = {'q': vDq, '1': vD1, 'o': vD2, '2': vD2}[k]
        sd = {'q': S_WQ, '1': S_W1, 'o': S_WO, '2': S_W2}[k]
        for n in range(s['u']):
            def dma(n=n):
                s['vm'] = op('buffer_load_dwordx4 v%d, %s, s%d offen offset:%d lds' % (va[n], srd(sd), sOff, n * 1024))
            ops.append(dma)
        return ops

    def issue(self, n=1):
        for _ in range(n):
            if not self.can_issue():
                return
            for f in self.issue_ops():
                f()

    def dest(self, s):
        k, i = s['k'], s['i']
        if k == 'q':
            return ('v', WB + 12 * (i & 1))
        if k == 'o':
            return ('a', 16 * i)
        if k == '1':
            return ('a', 64 + 12 * i)
        if i < 4:
            return ('a', 16 * i)
        return ('v', 124 + 16 * (i - 4))

    def consume_ops(self):
        s = self.slots[self.nc]
        assert self.nc < self.ni
        self.nc += 1
        f_, base = self.dest(s)
        off0 = s['unit'] * 1024
        ops = [lambda: g.wait_vm(s['vm'])]
        k = s['k']
        reads = []
        if k in 'q1':
            for f in range(3):
                for h in range(2):
                    if k == 'q':
                        reads.append((base + 4 * f + 2 * h, vTr96, off0 + 1536 * h + 32 * f))
                    else:
                        reads.append((base + 4 * f + 2 * h, vTr96b, off0 + 1536 * h + 8 * f))
        else:
            for f in range(4):
                for h in range(2):
                    reads.append((base + 4 * f + 2 * h, vTrA if f < 2 else vTrB, off0 + 2048 * h + 8 * (f & 1)))
        for n, (d, va, off) in enumerate(reads):
            def rd(d=d, va=va, off=off, last=(n == len(reads) - 1)):
                q = op('ds_read_b64_tr_b16 %s[%d:%d], v%d offset:%d' % (f_, d, d + 1, va, off))
                if last:
                    for x in range(s['unit'], s['unit'] + s['u']):
                        self.busy[x] = False
                        self.freeseq[x] = q
            ops.append(rd)
        return ops

    def consume(self, n=1):
        for _ in range(n):
            if self.nc >= self.ni:
                return
            for f in self.consume_ops():
                f()

    def consume_upto(self, idx):
        while self.nc < idx:
            if self.nc >= self.ni:
                self.issue(1)
            self.consume(1)

    def pump(self, limit):
        while self.nc < min(self.ni, limit):
            self.consume(1)
        while self.can_issue():
            self.issue(1)


IDX_O, IDX_1, IDX_2, IDX_END = 16, 20, 36, 47
S = Stream()


def interleave(main, side, per=1, start=0):
    side = list(side)
    for n, m in enumerate(main):
        op(m)
        if n >= start:
            for _ in range(per):
                if side:
                    side.pop(0)()
    for f in side:
        f()


poll_id = [0]


def post(val, store_seq):
    g.wait_vm(store_seq)
    op('s_barrier')
    n = poll_id[0]
    R = g.raw
    R('    s_cmp_lg_u32 s%d, 0' % sW)
    R('    s_cbranch_scc1 NOPOST_%d' % n)
    R('    v_mov_b32 v%d, %d' % (vFlag, val))
    R('    s_mov_b64 exec, 1')
    R('    buffer_store_dword v%d, off, %s, s%d sc1' % (vFlag, srd(S_A), sFlagB))
    R('    s_mov_b64 exec, -1')
    R('NOPOST_%d:' % n)


def wait_flags(val):
    n = poll_id[0]
    poll_id[0] += 1
    R = g.raw
    R('    s_cmp_lg_u32 s%d, 0' % sW)
    R('    s_cbranch_scc1 DONE_%d' % n)
    R('    s_mov_b32 s%d, 0x40000' % sSpin)
    if n == 0:
        R('INIT_%d:' % n)
        R('    buffer_load_dwordx2 v[%d:%d], off, %s, s%d sc1' % (vPoll, vPoll + 1, srd(S_DBG), sDbg))
        R('    s_waitcnt vmcnt(0)')
        R('    v_and_b32 v%d, v%d, v%d' % (vPoll, vPoll, vPoll + 1))
        R('    s_nop 1')
        R('    v_readfirstlane_b32 s%d, v%d' % (sT0, vPoll))
        R('    s_nop 1')
        R('    s_cmp_eq_u32 s%d, 0x01010101' % sT0)
        R('    s_cbranch_scc1 POLL_%d' % n)
        R('    s_sub_u32 s%d, s%d, 1' % (sSpin, sSpin))
        R('    s_cmp_lg_u32 s%d, 0' % sSpin)
        R('    s_cbranch_scc1 INIT_%d' % n)
    R('POLL_%d:' % n)
    R('    buffer_load_dword v%d, v%d, %s, s%d offen sc1' % (vPoll, vLane4, srd(S_A), sFlag))
    R('    s_waitcnt vmcnt(0)')
    R('    v_cmp_gt_u32 vcc, %d, v%d' % (val, vPoll))
    R('    s_nop 4')
    R('    s_cbranch_vccz DONE_%d' % n)
    R('    s_sub_u32 s%d, s%d, 1' % (sSpin, sSpin))
    R('    s_cmp_lg_u32 s%d, 0' % sSpin)
    R('    s_cbranch_scc1 POLL_%d' % n)
    R('DONE_%d:' % n)
    op('s_barrier')


g.raw('; @launch grid=(256,1,1) block=(256,1,1) lds=%d' % LDS_TOTAL)
g.raw('.amdgcn_target "amdgcn-amd-amdhsa--gfx950"')
g.raw('.text')
g.raw('.globl ' + NAME)
g.raw('.p2align 8')
g.raw('.type %s,@function' % NAME)
g.raw(NAME + ':')
op('s_cmp_ge_u32 s2, 256')
op('s_cbranch_scc1 END')
op('s_load_dwordx16 s[4:19], s[0:1], 0')
op('s_load_dwordx2 s[20:21], s[0:1], 64')
T0, T1, T2, T3, T4, T5 = 32, 33, 34, 35, 36, 37
vL = 38
op('v_and_b32 v%d, 63, v0' % vL)
op('v_lshrrev_b32 v%d, 6, v0' % T0)
op('v_and_b32 v%d, 15, v0' % vM)
op('v_bfe_u32 v%d, v0, 4, 2' % vG)
op('v_readfirstlane_b32 s%d, v%d' % (sW, T0))
op('v_lshlrev_b32 v%d, 4, v%d' % (vL16, vL))
op('s_and_b32 s%d, s2, 7' % sC)
op('s_lshr_b32 s%d, s2, 6' % sT0)
op('s_lshl_b32 s%d, s%d, 3' % (sT0, sT0))
op('s_add_u32 s%d, s%d, s%d' % (sC, sC, sT0))
op('s_bfe_u32 s%d, s2, 0x30003' % sJ)
op('s_lshl_b32 s%d, s%d, 16' % (sR, sC))
for q in range(1, 5):
    op('s_add_u32 s%d, s%d, %d' % (sXg[q], sR, (q - 1) * 16384))
op('s_lshl_b32 s%d, s%d, 2' % (sT0, sW))
op('v_add_u32 v%d, s%d, v%d' % (T0, sT0, vG))
op('v_lshlrev_b32 v%d, 10, v%d' % (T1, T0))
op('v_lshl_add_u32 v%d, v%d, 4, v%d' % (vXo, vM, T1))
vX0 = 39
op('s_sub_u32 s%d, s%d, 16384' % (sT1, sR))
op('v_add_u32 v%d, s%d, v%d' % (vX0, sT1, vXo))
g.raw('    s_waitcnt lgkmcnt(0)')


def mk_srd(b, plo, size, add=0):
    if add:
        op('s_add_u32 s%d, s%d, %d' % (b, plo, add))
        op('s_addc_u32 s%d, s%d, 0' % (b + 1, plo + 1))
        op('s_and_b32 s%d, s%d, 0xffff' % (b + 1, b + 1))
    else:
        op('s_mov_b32 s%d, s%d' % (b, plo))
        op('s_and_b32 s%d, s%d, 0xffff' % (b + 1, plo + 1))
    op('s_mov_b32 s%d, %d' % (b + 2, size))
    op('s_mov_b32 s%d, 0x00020000' % (b + 3))


mk_srd(S_X, 4, 2097152)
RAW = 160
for gq in range(5):
    for q in range(4):
        d = RAW + 16 * gq + 4 * q
        if gq == 0:
            op('buffer_load_dwordx4 %s, v%d, %s, 0 offen offset:%d' % (vr(d, 4), vX0, srd(S_X), q * 256))
        else:
            op('buffer_load_dwordx4 %s, v%d, %s, s%d offen offset:%d' % (vr(d, 4), vXo, srd(S_X), sXg[gq], q * 256))
mk_srd(S_WQ, 6, 1572864)
op('s_mul_i32 s%d, s%d, %d' % (sRing, sW, RSTRIDE))
op('s_add_u32 s%d, s%d, %d' % (sRing, sRing, RING0))
op('s_mul_i32 s%d, s%d, 3' % (sT0, sW))
op('s_lshl_b32 s%d, s%d, 7' % (sT1, sJ))
op('s_mul_i32 s%d, s%d, 384' % (sT2, sJ))
op('s_mul_i32 s%d, s%d, 96' % (sOff, sW))
op('s_add_u32 s%d, s%d, s%d' % (sT2, sT2, sOff))
for i in range(3):
    op('v_add_u32 v%d, %d, v%d' % (T0, 64 * i, vL))
    op('v_mul_u32_u24 v%d, 171, v%d' % (T1, T0))
    op('v_lshrrev_b32 v%d, 10, v%d' % (T1, T1))
    op('v_mul_u32_u24 v%d, 6, v%d' % (T2, T1))
    op('v_sub_u32 v%d, v%d, v%d' % (T2, T0, T2))
    op('v_bfe_u32 v%d, v%d, 2, 2' % (T3, T1))
    op('v_and_b32 v%d, 3, v%d' % (T4, T1))
    op('v_lshl_add_u32 v%d, v%d, 3, v%d' % (T3, T3, T4))
    op('v_lshrrev_b32 v%d, 4, v%d' % (T4, T1))
    op('v_lshl_add_u32 v%d, v%d, 2, v%d' % (T3, T4, T3))
    op('v_lshrrev_b32 v%d, 1, v%d' % (T4, T2))
    op('v_add_u32 v%d, s%d, v%d' % (T4, sT0, T4))
    op('v_lshrrev_b32 v%d, 2, v%d' % (T5, T4))
    op('v_lshlrev_b32 v%d, 10, v%d' % (T5, T5))
    op('v_and_b32 v%d, 3, v%d' % (T4, T4))
    op('v_lshl_add_u32 v%d, v%d, 5, v%d' % (T5, T4, T5))
    op('v_and_b32 v%d, 1, v%d' % (T4, T2))
    op('v_lshl_add_u32 v%d, v%d, 4, v%d' % (T5, T4, T5))
    op('v_add_u32 v%d, s%d, v%d' % (T5, sT1, T5))
    op('v_mul_u32_u24 v%d, 3072, v%d' % (T4, T3))
    op('v_add_u32 v%d, v%d, v%d' % (T5, T5, T4))
    op('v_subrev_u32 v%d, %d, v%d' % (vDq[i], 1024 * i, T5))
    op('v_mul_u32_u24 v%d, 2752, v%d' % (T4, T3))
    op('v_lshl_add_u32 v%d, v%d, 4, v%d' % (T4, T2, T4))
    op('v_add_u32 v%d, s%d, v%d' % (T4, sT2, T4))
    op('v_subrev_u32 v%d, %d, v%d' % (vD1[i], 1024 * i, T4))
WB = 92
XB = 116
S.issue(6)
mk_srd(S_WO, 8, 524288)
mk_srd(S_W1, 12, 1409024)
mk_srd(S_W2, 14, 1409024)
mk_srd(S_OUT, 16, 2097152)
mk_srd(S_DBG, 18, 256)
mk_srd(S_O, 20, 2097152)
mk_srd(S_H, 20, 2097152, add=2097152)
mk_srd(S_A, 20, 6291456 + 8192, add=4194304)
if STAMPS:
    mk_srd(S_TS, 20, 65536, add=33554432)
stamp('start')
for t in range(4):
    op('s_add_u32 s%d, s%d, %d' % (sT0, sW, t))
    op('s_and_b32 s%d, s%d, 3' % (sT0, sT0))
    op('s_lshl_b32 s%d, s%d, 14' % (sT0, sT0))
    op('s_add_u32 s%d, s%d, s%d' % (sT[t], sR, sT0))
    op('s_mul_i32 s%d, s%d, 3' % (sTA[t], sT[t]))
op('s_lshl_b32 s%d, s%d, 3' % (sDbg, sC))
op('s_lshl_b32 s%d, s%d, 8' % (sFlag, sC))
op('s_add_u32 s%d, s%d, 6291456' % (sFlag, sFlag))
op('s_lshl_b32 s%d, s%d, 2' % (sT0, sJ))
op('s_add_u32 s%d, s%d, s%d' % (sFlagB, sFlag, sT0))
op('v_mov_b32 v%d, 0' % T0)
op('s_mov_b64 exec, 1')
init_q = op('buffer_store_dword v%d, off, %s, s%d sc1' % (T0, srd(S_A), sFlagB))
op('s_mov_b64 exec, -1')
op('s_mov_b32 s%d, 0x3f803f80' % sOnes)
op('s_mov_b32 s%d, 0x05040100' % sPLo)
op('s_mov_b32 s%d, 0x07060302' % sPHi)
op('s_lshl_b32 s%d, s%d, 17' % (sWoB, sW))
op('s_mul_i32 s%d, s%d, %d' % (sW2B, sW, 11 * 32768))
op('s_mov_b32 s%d, 98304' % sC98)
op('s_lshl_b32 s%d, s%d, 2' % (sT0, sW))
op('v_add_u32 v%d, s%d, v%d' % (T0, sT0, vG))
op('v_xor_b32 v%d, v%d, v%d' % (T1, vM, T0))
op('v_lshlrev_b32 v%d, 4, v%d' % (T1, T1))
op('v_lshl_add_u32 v%d, v%d, 10, v%d' % (vXTw, T0, T1))
vXTw4 = 40
op('v_add_u32 v%d, 0x10000, v%d' % (vXTw4, vXTw))
op('v_lshlrev_b32 v%d, 3, v%d' % (vStW, T0))
op('v_add_u32 v%d, %d, v%d' % (vStW, ST, vStW))
op('v_lshlrev_b32 v%d, 3, v%d' % (vStR, vM))
op('v_add_u32 v%d, %d, v%d' % (vStR, ST, vStR))
op('v_xor_b32 v%d, v%d, v%d' % (T1, vM, vG))
for b in range(4):
    op('v_xor_b32 v%d, %d, v%d' % (T2, 4 * b, T1))
    op('v_lshlrev_b32 v%d, 4, v%d' % (T2, T2))
    op('v_lshl_add_u32 v%d, v%d, 10, v%d' % (vXr[b], vM, T2))
    op('v_add_u32 v%d, 0x10000, v%d' % (vXr4[b], vXr[b]))
op('v_lshrrev_b32 v%d, 2, v%d' % (T0, vL))
op('v_and_b32 v%d, 3, v%d' % (T1, vL))
op('v_mul_u32_u24 v%d, 96, v%d' % (T2, T0))
op('v_add_u32 v%d, s%d, v%d' % (T2, sRing, T2))
op('v_lshl_add_u32 v%d, v%d, 3, v%d' % (vTr96, T1, T2))
op('v_mul_u32_u24 v%d, 24, v%d' % (T3, T1))
op('v_add_u32 v%d, v%d, v%d' % (vTr96b, T3, T2))
op('v_bfe_u32 v%d, v%d, 3, 1' % (T3, vL))
op('v_lshl_add_u32 v%d, v%d, 2, v%d' % (T3, T3, T1))
op('v_lshlrev_b32 v%d, 4, v%d' % (T3, T3))
op('v_lshl_add_u32 v%d, v%d, 7, v%d' % (T3, T0, T3))
op('v_xor_b32 v%d, 64, v%d' % (T4, T3))
op('v_add_u32 v%d, s%d, v%d' % (vTrA, sRing, T3))
op('v_add_u32 v%d, s%d, v%d' % (vTrB, sRing, T4))
op('v_lshrrev_b32 v%d, 5, v%d' % (T0, vL))
op('v_bfe_u32 v%d, v%d, 3, 2' % (T1, vL))
op('v_lshl_add_u32 v%d, v%d, 3, v%d' % (T0, T0, T1))
op('v_and_b32 v%d, 7, v%d' % (T1, vL))
op('v_bfe_u32 v%d, v%d, 4, 1' % (T2, vL))
op('v_lshlrev_b32 v%d, 2, v%d' % (T2, T2))
op('v_xor_b32 v%d, v%d, v%d' % (T1, T1, T2))
op('v_lshlrev_b32 v%d, 4, v%d' % (T1, T1))
op('v_lshl_add_u32 v%d, v%d, 10, v%d' % (T0, T0, T1))
op('s_lshl_b32 s%d, s%d, 7' % (sT1, sJ))
op('v_add_u32 v%d, s%d, v%d' % (T0, sT1, T0))
for i in range(4):
    op('v_add_u32 v%d, %d, v%d' % (vD2[i], (16 * (i & 1) + 4 * (i >> 1) - i) * 1024, T0))
op('s_lshl_b32 s%d, s%d, 8' % (sT0, sW))
op('v_lshlrev_b32 v%d, 4, v%d' % (T0, vG))
op('v_lshl_add_u32 v%d, v%d, 10, v%d' % (T0, vM, T0))
op('v_add_u32 v%d, s%d, v%d' % (vOf, sT0, T0))
op('s_add_u32 s%d, s%d, s%d' % (sT0, sT1, sT[0]))
op('v_add_u32 v%d, s%d, v%d' % (vHs, sT0, T0))


def stage(raw, ngroups, ones_row):
    for x in range(2 * ngroups):
        op('v_mov_b32 v%d, 0' % (SA + x))
    for gq in range(ngroups):
        for q in range(4):
            d = raw + 16 * gq + 4 * q
            if ones_row and gq == 0:
                op('s_cmp_eq_u32 s%d, 0' % sW)
                op('s_cselect_b32 s%d, 0xffff, 0' % sT0)
                g.wait_vm(g.pend[('v', d)][1])
                op('s_mov_b32 exec_lo, s%d' % sT0)
                op('s_mov_b32 exec_hi, 0')
                for x in range(4):
                    op('v_mov_b32 v%d, s%d' % (d + x, sOnes))
                op('s_mov_b64 exec, -1')
            if gq < 4:
                op('ds_write_b128 v%d, %s offset:%d' % (vXTw, vr(d, 4), gq * 16384 + q * 256))
            else:
                op('ds_write_b128 v%d, %s offset:%d' % (vXTw4, vr(d, 4), q * 256))
            for x in range(4):
                op('v_dot2c_f32_bf16 v%d, s%d, v%d' % (SA + 2 * gq, sOnes, d + x))
                op('v_dot2c_f32_bf16 v%d, v%d, v%d' % (SA + 2 * gq + 1, d + x, d + x))


def stats_final_ops(ngroups, tmp):
    L = []
    A = lambda s: L.append(lambda: op(s))
    for ror in (8, 4, 2, 1):
        for x in range(2 * ngroups):
            A('v_add_f32_dpp v%d, v%d, v%d row_ror:%d row_mask:0xf bank_mask:0xf' % (SA + x, SA + x, SA + x, ror))
    for gq in range(ngroups):
        s, q = SA + 2 * gq, SA + 2 * gq + 1
        A('v_mul_f32 v%d, 0xbb000000, v%d' % (s, s))
        A('v_mul_f32 v%d, 0x3b000000, v%d' % (q, q))
    for gq in range(ngroups):
        s, q = SA + 2 * gq, SA + 2 * gq + 1
        A('v_fma_f32 v%d, -v%d, v%d, v%d' % (q, s, s, q))
        A('v_max_f32 v%d, 0, v%d' % (q, q))
        A('v_add_f32 v%d, 0x3727c5ac, v%d' % (q, q))
    for gq in range(ngroups):
        A('v_rsq_f32 v%d, v%d' % (SA + 2 * gq + 1, SA + 2 * gq + 1))
    for gq in range(ngroups):
        A('ds_write_b64 v%d, %s offset:%d' % (vStW, vr(SA + 2 * gq, 2), gq * 128))
    return L


def xread_ops(ks, buf, ntiles):
    L = []
    a, b = ks >> 2, ks & 3
    for t in range(ntiles):
        d = buf + 4 * t
        if t < 4:
            s = 'ds_read_b128 %s, v%d offset:%d' % (vr(d, 4), vXr[b], t * 16384 + a * 256)
        else:
            s = 'ds_read_b128 %s, v%d offset:%d' % (vr(d, 4), vXr4[b], a * 256)
        L.append(lambda s=s: op(s))
    return L


stage(RAW, 5, True)
g.wait_all_lg()
op('s_barrier')
stamp('x staged')
ACC = 32
S.consume(1)
for f in xread_ops(0, XB, 5):
    f()
fin = stats_final_ops(5, None)
for ks in range(16):
    wb = WB + 12 * (ks & 1)
    xb = XB + 20 * (ks & 1)
    main = []
    for t in range(5):
        for f in range(3):
            d = ACC + 12 * t + 4 * f
            c = '0' if ks == 0 else vr(d, 4)
            main.append('v_mfma_f32_16x16x32_bf16 %s, %s, %s, %s' % (vr(d, 4), vr(wb + 4 * f, 4), vr(xb + 4 * t, 4), c))
    g.wait_all_lg()
    if ks == 15:
        g.wait_vm(init_q)
        op('s_barrier')
    op(main[0])
    side = []
    if ks < 15:
        side += xread_ops(ks + 1, XB + 20 * ((ks + 1) & 1), 5)
        side += S.consume_ops()
    if S.can_issue():
        side += S.issue_ops()
    n = 12 if ks >= 1 else 0
    side += fin[:n]
    fin = fin[n:]
    interleave(main[1:], side, per=2)
assert not fin
stamp('p1 gemm')
op('s_add_u32 s%d, s%d, s%d' % (sT0, sDbg, sJ))
op('v_mov_b32 v%d, 1' % vFlag)
op('s_mov_b64 exec, 1')
op('buffer_store_byte v%d, off, %s, s%d sc1' % (vFlag, srd(S_DBG), sT0))
op('s_mov_b64 exec, -1')
op('v_bfe_u32 v%d, v%d, 4, 3' % (vLane4, vL16))
op('v_lshlrev_b32 v%d, 2, v%d' % (vLane4, vLane4))
op('buffer_load_dwordx4 %s, v%d, %s, 0 offen' % (vr(HT, 4), vHs, srd(S_X)))
op('buffer_load_dwordx4 %s, v%d, %s, 0 offen offset:64' % (vr(HT + 4, 4), vHs, srd(S_X)))
while S.can_issue():
    S.issue(1)
CS = 92
STP = 104
for t in range(5):
    op('ds_read_b64 %s, v%d offset:%d' % (vr(STP + 2 * t, 2), vStR, t * 128))
for x in range(12):
    op('v_mov_b32_dpp v%d, v%d row_newbcast:0 row_mask:0xf bank_mask:0xf' % (CS + x, ACC + x))
vQw = 116
op('s_mul_i32 s%d, s%d, 11520' % (sT0, sW))
op('v_mul_u32_u24 v%d, 48, v%d' % (vQw, vM))
op('v_lshl_add_u32 v%d, v%d, 3, v%d' % (vQw, vG, vQw))
op('v_add_u32 v%d, s%d, v%d' % (vQw, sT0, vQw))
PK = 120
for t in range(5):
    st = vr(STP + 2 * t, 2)
    for f in range(3):
        d = ACC + 12 * t + 4 * f
        for hh in range(2):
            op('v_pk_fma_f32 %s, %s, %s, %s op_sel:[0,0,0] op_sel_hi:[1,0,1]' % (
                vr(d + 2 * hh, 2), vr(CS + 4 * f + 2 * hh, 2), st, vr(d + 2 * hh, 2)))
    for f in range(3):
        d = ACC + 12 * t + 4 * f
        for hh in range(2):
            op('v_pk_mul_f32 %s, %s, %s op_sel:[0,1] op_sel_hi:[1,1]' % (vr(d + 2 * hh, 2), vr(d + 2 * hh, 2), st))
    for f in range(3):
        d = ACC + 12 * t + 4 * f
        p = PK + 6 * (t & 1) + 2 * f
        op('v_cvt_pk_bf16_f32 v%d, v%d, v%d' % (p, d, d + 1))
        op('v_cvt_pk_bf16_f32 v%d, v%d, v%d' % (p + 1, d + 2, d + 3))
        op('ds_write_b64 v%d, %s offset:%d' % (vQw, vr(p, 2), f * 3840 + t * 768))
g.wait_all_lg()
op('s_barrier')
stamp('qkv')
AQ, AK, AV, AS_, AO, AT, AP, AOP = 32, 40, 104, 168, 176, 192, 208, 212
vK = 220
vRow = 221
vOs = 222
op('v_lshrrev_b32 v%d, 4, v%d' % (vRow, vL16))
op('s_mul_i32 s%d, s%d, 3840' % (sT0, sW))
op('v_mul_u32_u24 v%d, 48, v%d' % (vK, vRow))
op('v_add_u32 v%d, s%d, v%d' % (vK, sT0, vK))
for hh in range(2):
    op('ds_read_b128 %s, v%d offset:%d' % (vr(AQ + 4 * hh, 4), vK, 96 + 672 + 16 * hh))
for i in range(8):
    for hh in range(2):
        op('ds_read_b128 %s, v%d offset:%d' % (vr(AK + 8 * i + 4 * hh, 4), vK, 96 + 15360 + (14 - 2 * i) * 48 + 16 * hh))
for i in range(8):
    op('v_mov_b32 v%d, 0' % (AS_ + i))
for x in range(16):
    op('v_mov_b32 v%d, 0' % (AO + x))
op('s_lshl_b32 s%d, s%d, 7' % (sT0, sJ))
op('s_lshl_b32 s%d, s%d, 5' % (sT1, sW))
op('s_add_u32 s%d, s%d, s%d' % (sT0, sT0, sT1))
op('s_add_u32 s%d, s%d, s%d' % (sT0, sT0, sR))
op('v_lshlrev_b32 v%d, 10, v%d' % (vOs, vRow))
op('v_add_u32 v%d, s%d, v%d' % (vOs, sT0, vOs))
for i in range(8):
    for d in range(8):
        op('v_dot2c_f32_bf16 v%d, v%d, v%d' % (AS_ + i, AQ + d, AK + 8 * i + d))
    for hh in range(2):
        op('ds_read_b128 %s, v%d offset:%d' % (vr(AV + 8 * i + 4 * hh, 4), vK, 96 + 30720 + (14 - 2 * i) * 48 + 16 * hh))
op('s_cmp_lg_u32 s%d, 0' % sC)
op('s_nop 3')
op('s_cbranch_scc1 NOMASK')
op('v_mov_b32 v%d, 0xff800000' % AT)
for i in range(1, 8):
    op('v_cmp_gt_u32 vcc, %d, v%d' % (2 * i, vRow))
    op('v_cndmask_b32 v%d, v%d, v%d, vcc' % (AS_ + i, AS_ + i, AT))
g.label('NOMASK')
CEXP = 0x3eb8aa3b
op('v_max3_f32 v%d, v%d, v%d, v%d' % (AT, AS_, AS_ + 1, AS_ + 2))
op('v_max3_f32 v%d, v%d, v%d, v%d' % (AT + 1, AS_ + 3, AS_ + 4, AS_ + 5))
op('v_max3_f32 v%d, v%d, v%d, v%d' % (AT, AT, AS_ + 6, AS_ + 7))
op('v_max_f32 v%d, v%d, v%d' % (AT, AT, AT + 1))
op('s_mov_b32 s%d, 0x%x' % (sT0, CEXP))
op('v_mul_f32 v%d, s%d, v%d' % (AT, sT0, AT))
for i in range(8):
    op('v_fma_f32 v%d, v%d, s%d, -v%d' % (AS_ + i, AS_ + i, sT0, AT))
for i in range(8):
    op('v_exp_f32 v%d, v%d' % (AS_ + i, AS_ + i))
op('v_pk_add_f32 %s, %s, %s' % (vr(AT, 2), vr(AS_, 2), vr(AS_ + 2, 2)))
op('v_pk_add_f32 %s, %s, %s' % (vr(AT + 2, 2), vr(AS_ + 4, 2), vr(AS_ + 6, 2)))
op('v_pk_add_f32 %s, %s, %s' % (vr(AT, 2), vr(AT, 2), vr(AT + 2, 2)))
op('v_add_f32 v%d, v%d, v%d' % (AT, AT, AT + 1))
op('v_rcp_f32 v%d, v%d' % (AT, AT))
for i in range(4):
    op('v_pk_mul_f32 %s, %s, %s op_sel:[0,0] op_sel_hi:[1,0]' % (vr(AS_ + 2 * i, 2), vr(AS_ + 2 * i, 2), vr(AT, 2)))
for i in range(4):
    op('v_cvt_pk_bf16_f32 v%d, v%d, v%d' % (AP + i, AS_ + 2 * i, AS_ + 2 * i + 1))
for i in range(4):
    va, vb = AV + 16 * i, AV + 16 * i + 8
    for half in range(2):
        for d in range(4 * half, 4 * half + 4):
            op('v_perm_b32 v%d, v%d, v%d, s%d' % (AT + 2 * (d & 3), vb + d, va + d, sPLo))
            op('v_perm_b32 v%d, v%d, v%d, s%d' % (AT + 2 * (d & 3) + 1, vb + d, va + d, sPHi))
        for d in range(4 * half, 4 * half + 4):
            op('v_dot2c_f32_bf16 v%d, v%d, v%d' % (AO + 2 * d, AP + i, AT + 2 * (d & 3)))
            op('v_dot2c_f32_bf16 v%d, v%d, v%d' % (AO + 2 * d + 1, AP + i, AT + 2 * (d & 3) + 1))
for d in range(8):
    op('v_cvt_pk_bf16_f32 v%d, v%d, v%d' % (AOP + d, AO + 2 * d, AO + 2 * d + 1))
op('buffer_store_dwordx4 %s, v%d, %s, 0 offen sc1' % (vr(AOP, 4), vOs, srd(S_O)))
q = op('buffer_store_dwordx4 %s, v%d, %s, 0 offen offset:16 sc1' % (vr(AOP + 4, 4), vOs, srd(S_O)))
stamp('attn')
op('s_mul_i32 s%d, s%d, 704' % (sT0, sW))
op('v_mul_u32_u24 v%d, 3072, v%d' % (vAf, vM))
op('v_lshl_add_u32 v%d, v%d, 4, v%d' % (vAf, vG, vAf))
op('v_add_u32 v%d, s%d, v%d' % (vAf, sT0, vAf))
op('v_and_b32 v%d, 1, v%d' % (T0, vG))
op('v_lshl_add_u32 v%d, v%d, 4, v%d' % (T0, T0, vM))
op('v_mul_u32_u24 v%d, 3072, v%d' % (T0, T0))
op('v_lshrrev_b32 v%d, 1, v%d' % (T1, vG))
op('v_mul_u32_u24 v%d, 48, v%d' % (T1, T1))
op('v_add_u32 v%d, v%d, v%d' % (T0, T0, T1))
op('s_mul_i32 s%d, s%d, 3' % (sT0, sR))
op('s_add_u32 s%d, s%d, s%d' % (sT0, sT0, sT2))
op('v_add_u32 v%d, s%d, v%d' % (vAs, sT0, T0))
vRw = [None, 16, 6, 7]
S.pump(IDX_2)
post(1, q)
S.pump(IDX_2)


def ksplit_phase(nks, bfrag, afrag, loads, rdbuf, final, pump_after_loads, pump_after_mfma):
    ACC = 32
    for f in loads:
        f()
    pump_after_loads()
    order = (1, 2, 3, 0)
    RW = 96
    for n, tau in enumerate((1, 2, 3)):
        op('s_add_u32 s%d, s%d, %d' % (sT0, sW, tau))
        op('s_and_b32 s%d, s%d, 3' % (sT0, sT0))
        op('s_mul_i32 s%d, s%d, 12288' % (sT0, sT0))
        op('v_add_u32 v%d, s%d, v%d' % (RW + n, sT0, vL16))
    op('s_mul_i32 s%d, s%d, 12288' % (sT0, sW))
    op('v_add_u32 v%d, s%d, v%d' % (RW + 3, sT0, vL16))
    pendw = []
    for tau in order:
        main = []
        for ks in range(nks):
            for f in range(4):
                d = ACC + 16 * tau + 4 * f
                c = '0' if ks == 0 else vr(d, 4)
                main.append('v_mfma_f32_16x16x32_bf16 %s, %s, %s, %s' % (vr(d, 4), afrag(ks, f), bfrag(tau, ks), c))
        interleave(main, pendw, per=1, start=4)
        pendw = []
        if tau != 0:
            for f in range(4):
                s = 'ds_write_b128 v%d, %s offset:%d' % (RW + tau - 1, vr(ACC + 16 * tau + 4 * f, 4), (tau - 1) * 4096 + f * 1024)
                pendw.append(lambda s=s: op(s))
    g.wait_all_lg()
    op('s_barrier')
    for sl in range(3):
        for f in range(4):
            op('ds_read_b128 %s, v%d offset:%d' % (vr(rdbuf + 16 * sl + 4 * f, 4), RW + 3, sl * 4096 + f * 1024))
    pump_after_mfma()
    U = 100
    for x in range(8):
        op('v_lshlrev_b32 v%d, 16, v%d' % (U + 2 * x, HT + x))
        op('v_and_b32 v%d, 0xffff0000, v%d' % (U + 2 * x + 1, HT + x))
    for x in range(8):
        op('v_pk_add_f32 %s, %s, %s' % (vr(ACC + 2 * x, 2), vr(ACC + 2 * x, 2), vr(U + 2 * x, 2)))
    for sl in range(3):
        for x in range(8):
            op('v_pk_add_f32 %s, %s, %s' % (vr(ACC + 2 * x, 2), vr(ACC + 2 * x, 2), vr(rdbuf + 16 * sl + 2 * x, 2)))
    for x in range(8):
        op('v_cvt_pk_bf16_f32 v%d, v%d, v%d' % (HT + x, ACC + 2 * x, ACC + 2 * x + 1))
    return final()


wait_flags(1)
stamp('flag1')
OF = 124
loads = []
for tau in (1, 2, 3, 0):
    for ks in range(4):
        s = 'buffer_load_dwordx4 %s, v%d, %s, s%d offen offset:%d sc1' % (vr(OF + 16 * tau + 4 * ks, 4), vOf, srd(S_O), sT[tau], ks * 64)
        loads.append(lambda s=s: op(s))


def p2_final():
    op('buffer_store_dwordx4 %s, v%d, %s, 0 offen sc1' % (vr(HT, 4), vHs, srd(S_H)))
    return op('buffer_store_dwordx4 %s, v%d, %s, 0 offen offset:64 sc1' % (vr(HT + 4, 4), vHs, srd(S_H)))


S.consume_upto(IDX_1)
q = ksplit_phase(4, lambda tau, ks: vr(OF + 16 * tau + 4 * ks, 4), lambda ks, f: ar(16 * ks + 4 * f, 4), loads, 188,
                 p2_final, lambda: S.pump(IDX_2), lambda: None)
stamp('p2')
S.pump(IDX_2 + 8)
post(2, q)
S.pump(IDX_END)
S.consume_upto(IDX_2)
CS3 = 112
ONE = 96
for x in range(4):
    op('v_mov_b32 v%d, s%d' % (ONE + x, sOnes))
for ks in range(16):
    for f in range(3):
        c = '0' if ks == 0 else vr(CS3 + 4 * f, 4)
        op('v_mfma_f32_16x16x32_bf16 %s, %s, %s, %s' % (vr(CS3 + 4 * f, 4), ar(64 + 12 * ks + 4 * f, 4), vr(ONE, 4), c))

wait_flags(2)
stamp('flag2')
RAWH = 32
for gq in range(4):
    for q in range(4):
        op('buffer_load_dwordx4 %s, v%d, %s, s%d offen offset:%d sc1' % (
            vr(RAWH + 16 * gq + 4 * q, 4), vXo, srd(S_H), sXg[gq + 1], q * 256))
S.pump(IDX_END)
stage(RAWH, 4, False)
g.wait_all_lg()
op('s_barrier')
stamp('h staged')
HB = 80
for f in xread_ops(0, HB, 4):
    f()
fin = stats_final_ops(4, None)
for ks in range(16):
    hb = HB + 16 * (ks & 1)
    main = []
    for t in range(4):
        for f in range(3):
            d = ACC + 12 * t + 4 * f
            c = '0' if ks == 0 else vr(d, 4)
            main.append('v_mfma_f32_16x16x32_bf16 %s, %s, %s, %s' % (vr(d, 4), ar(64 + 12 * ks + 4 * f, 4), vr(hb + 4 * t, 4), c))
    g.wait_all_lg()
    if ks == 8:
        op('s_barrier')
    op(main[0])
    side = []
    if ks < 15:
        side += xread_ops(ks + 1, HB + 16 * ((ks + 1) & 1), 4)
    n = 12 if ks >= 1 else 0
    side += fin[:n]
    fin = fin[n:]
    if ks == 12:
        for t in range(4):
            s = 'ds_read_b64 %s, v%d offset:%d' % (vr(SA + 2 * t, 2), vStR, t * 128)
            side.append(lambda s=s: op(s))
    interleave(main[1:], side, per=2)
assert not fin
stamp('p3 gemm')
PK = 80
for t in range(4):
    st = vr(SA + 2 * t, 2)
    for f in range(3):
        d = ACC + 12 * t + 4 * f
        for hh in range(2):
            op('v_pk_fma_f32 %s, %s, %s, %s op_sel:[0,0,0] op_sel_hi:[1,0,1]' % (
                vr(d + 2 * hh, 2), vr(CS3 + 4 * f + 2 * hh, 2), st, vr(d + 2 * hh, 2)))
    for f in range(3):
        d = ACC + 12 * t + 4 * f
        for hh in range(2):
            op('v_pk_mul_f32 %s, %s, %s op_sel:[0,1] op_sel_hi:[1,1]' % (vr(d + 2 * hh, 2), vr(d + 2 * hh, 2), st))
    for x in range(6):
        d = ACC + 12 * t + 2 * x
        op('v_cvt_pk_bf16_f32 v%d, v%d, v%d' % (PK + 6 * t + x, d, d + 1))
    for x in range(6):
        op('v_pk_max_i16 v%d, v%d, 0' % (PK + 6 * t + x, PK + 6 * t + x))
    if t & 1:
        b = PK + 6 * (t - 1)
        for x in range(6):
            op('v_permlane16_swap_b32 v%d, v%d' % (b + x, b + 6 + x))
        for x in range(3):
            q = op('buffer_store_dwordx4 %s, v%d, %s, %s offen offset:%d sc1' % (
                vr(b + 4 * x, 4), vAs, srd(S_A), ('0' if t == 1 else 's%d' % sC98), 16 * x))
stamp('p3')
S.pump(IDX_END)
post(3, q)
S.pump(IDX_END)
S.consume_upto(IDX_END)

wait_flags(3)
stamp('flag3')
loads = []
for tau in (1, 2, 3, 0):
    for t in range(11):
        s = 'buffer_load_dwordx4 %s, v%d, %s, s%d offen offset:%d sc1' % (ar(64 + 44 * tau + 4 * t, 4), vAf, srd(S_A), sTA[tau], t * 64)
        loads.append(lambda s=s: op(s))


def w2frag(t, f):
    return ar(16 * t + 4 * f, 4) if t < 4 else vr(124 + 16 * (t - 4) + 4 * f, 4)


def p4_final():
    op('buffer_store_dwordx4 %s, v%d, %s, 0 offen' % (vr(HT, 4), vHs, srd(S_OUT)))
    return op('buffer_store_dwordx4 %s, v%d, %s, 0 offen offset:64' % (vr(HT + 4, 4), vHs, srd(S_OUT)))


ksplit_phase(11, lambda tau, t: ar(64 + 44 * tau + 4 * t, 4), w2frag, loads, 124, p4_final, lambda: None, lambda: None)
stamp('end')
if STAMPS:
    g.raw('    s_waitcnt lgkmcnt(0)')
    op('s_lshl_b32 s%d, s2, 2' % sT0)
    op('s_add_u32 s%d, s%d, s%d' % (sT0, sT0, sW))
    op('s_lshl_b32 s%d, s%d, 6' % (sT0, sT0))
    op('s_mov_b64 exec, 1')
    for n in range(stamp_n[0]):
        op('v_mov_b32 v%d, s%d' % (32 + n, stamp_regs[n]))
        op('buffer_store_dword v%d, off, %s, s%d offset:%d' % (32 + n, srd(S_TS), sT0, 4 * n))
g.raw('END:')
g.raw('    s_endpgm')
g.raw('.section .rodata,"a"')
g.raw('.p2align 6')
g.raw('.amdhsa_kernel ' + NAME)
g.raw('  .amdhsa_next_free_vgpr 512')
g.raw('  .amdhsa_next_free_sgpr 102')
g.raw('  .amdhsa_accum_offset 256')
g.raw('  .amdhsa_group_segment_fixed_size 0')
g.raw('  .amdhsa_kernarg_size 72')
g.raw('  .amdhsa_user_sgpr_count 2')
g.raw('  .amdhsa_user_sgpr_kernarg_segment_ptr 1')
g.raw('  .amdhsa_system_sgpr_workgroup_id_x 1')
g.raw('.end_amdhsa_kernel')
open(OUT, 'w').write(g.text())
print('instructions', g.ninstr, 'nops', g.nops, 'slots issued', S.ni, 'consumed', S.nc)
```

```python
import sys
from asmgen import Gen

NAME = 'sequential_preLN__sliding_local_dilated__dense_activation_relu__prompt_kernel'
STAMPS = '--stamps' in sys.argv
OUT = 'cdna_kernels/sequential_preLN__sliding_local_dilated__dense_activation_relu__prompt.s'
for a in sys.argv[1:]:
    if a.startswith('--out='):
        OUT = a[6:]
CFG = {}
for a in sys.argv[1:]:
    if a.startswith('-D'):
        k, v = a[2:].split('=')
        CFG[k] = int(v)


def cfg(k, d):
    return CFG.get(k, d)


g = Gen()
op = g.op

RING0 = 81920
RUNITS = 19
RSTRIDE = RUNITS * 1024
ST = RING0 + 4 * RSTRIDE
FDUMP = ST + 640
LDS_TOTAL = FDUMP + 1024

S_X, S_WQ, S_WO, S_W1, S_W2, S_OUT, S_DBG, S_O, S_H, S_A = [24 + 4 * i for i in range(10)]
sW, sC, sJ, sR = 64, 65, 66, 67
sXg = [None, 68, 69, 70, 71]
sT = [72, 73, 74, 75]
sTA = [76, 77, 78, 79]
sRing, sOff, sFlag, sSpin, sT0, sT1, sOnes, sPLo, sPHi, sWoB, sW2B, sT2 = range(80, 92)
sFlagB = 92
sC98 = 93
sDbg = 3
S_TS = 96


def srd(b):
    return 's[%d:%d]' % (b, b + 3)


def vr(b, n=1):
    return 'v%d' % b if n == 1 else 'v[%d:%d]' % (b, b + n - 1)


def ar(b, n=1):
    return 'a%d' % b if n == 1 else 'a[%d:%d]' % (b, b + n - 1)


vL16, vM, vG, vXo, vXTw = 1, 2, 3, 4, 5
vXr = [6, 7, 8, 9]
vXr4 = [10, 11, 12, 13]
vDq = [14, 15, 16]
vD1 = [17, 18, 19]
vD2 = [20, 21, 22, 23]
vTr96, vTr96b, vTrA, vTrB = 24, 25, 26, 27
vOf, vStR, vStW, vHs = 28, 29, 30, 31
vAf = 14
vAs = 15
vAf2 = [14, 16, 4]
vPoll = 10
vFlag = 12
vLane4 = 13
vAnn = 11
FSTR = cfg('FSTR', 128)
HT = 238
SA = 246

stamp_regs = [4, 6, 8, 10, 12, 14, 16, 18, 20, 22, 94, 100, 0]
stamp_n = [0]


def stamp(name):
    if not STAMPS:
        return
    r = stamp_regs[stamp_n[0]]
    stamp_n[0] += 1
    g.comment('stamp ' + name)
    op('s_memtime s[%d:%d]' % (r, r + 1))


class Fill:
    def __init__(self):
        self.items = [('q', n) for n in range(12)] + [('o', n) for n in range(4)] + \
                     [('1', n) for n in range(11)] + [('2', n) for n in range(11)]
        self.n = 0
        self.seq = []
        self.cap = cfg('CAP1', 26)

    def upto_ops(self, idx):
        ops = []
        idx = min(idx, self.cap, len(self.items) - 1)
        while self.n <= idx:
            k, n = self.items[self.n]
            self.n += 1
            sd = {'q': S_WQ, '1': S_W1, 'o': S_WO, '2': S_W2}[k]

            def f(n=n, sd=sd):
                op('s_mov_b32 m0, %d' % FDUMP)
                op('s_mov_b32 s%d, %d' % (sOff, n * 131072))
                self.seq.append(op('buffer_load_dwordx4 v0, %s, s%d offen lds' % (srd(sd), sOff)))
            ops.append(f)
        return ops

    def upto(self, idx):
        for f in self.upto_ops(idx):
            f()


FL = Fill()
LOOK = cfg('LOOK', 4)
MARG = cfg('MARG', 1)


def fneed(s):
    k, i = s['k'], s['i']
    if k == 'q':
        r = (98304 * (i + 1) + 131071) // 131072 - 1 + MARG
    elif k == 'o':
        r = 15 + MARG
    elif k == '1':
        r = 16 + (88064 * (i + 1) + 131071) // 131072 - 1 + MARG
    else:
        r = 37
    return min(r, 37)


class Stream:
    def __init__(self):
        self.slots = []
        for ks in range(16):
            self.slots.append(dict(k='q', i=ks, u=3))
        for ks in range(4):
            self.slots.append(dict(k='o', i=ks, u=4))
        for ks in range(16):
            self.slots.append(dict(k='1', i=ks, u=3))
        for t in range(11):
            self.slots.append(dict(k='2', i=t, u=4))
        self.ni = 0
        self.nc = 0
        self.busy = [False] * RUNITS
        self.freeseq = [0] * RUNITS
        self.head = 0
        self.look = True
        self.limit = 16

    def find(self, u):
        for st in list(range(self.head, RUNITS)) + list(range(0, self.head)):
            if st + u <= RUNITS and not any(self.busy[st:st + u]):
                return st
        return None

    def can_issue(self):
        return self.ni < min(self.limit, len(self.slots)) and self.find(self.slots[self.ni]['u']) is not None

    def issue_ops(self):
        s = self.slots[self.ni]
        st = self.find(s['u'])
        assert st is not None
        self.ni += 1
        for x in range(st, st + s['u']):
            self.busy[x] = True
        self.head = (st + s['u']) % RUNITS
        s['unit'] = st
        need = max(self.freeseq[st:st + s['u']])
        k, i = s['k'], s['i']
        ops = []

        fn = min(fneed(s), FL.n - 1)

        def setup():
            g.wait_vm(FL.seq[fn])
            g.wait_lg(need)
            op('s_add_u32 m0, s%d, %d' % (sRing, st * 1024))
            if k == 'q':
                op('s_mov_b32 s%d, %d' % (sOff, i * 98304))
            elif k == '1':
                op('s_mov_b32 s%d, %d' % (sOff, i * 88064))
            elif k == 'o':
                op('s_add_u32 s%d, s%d, %d' % (sOff, sWoB, i * 32768))
            else:
                op('s_add_u32 s%d, s%d, %d' % (sOff, sW2B, i * 32768))
        ops.append(setup)
        va = {'q': vDq, '1': vD1, 'o': vD2, '2': vD2}[k]
        sd = {'q': S_WQ, '1': S_W1, 'o': S_WO, '2': S_W2}[k]
        for n in range(s['u']):
            def dma(n=n):
                s['vm'] = op('buffer_load_dwordx4 v%d, %s, s%d offen offset:%d lds' % (va[n], srd(sd), sOff, n * 1024))
            ops.append(dma)
        if self.ni < len(self.slots) and self.look:
            ops += FL.upto_ops(fneed(self.slots[self.ni]) + LOOK)
        return ops

    def issue(self, n=1):
        for _ in range(n):
            if not self.can_issue():
                return
            for f in self.issue_ops():
                f()

    def dest(self, s):
        k, i = s['k'], s['i']
        if k == 'q':
            return ('v', WB + 12 * (i & 1))
        if k == 'o':
            return ('a', 16 * i)
        if k == '1':
            return ('a', 64 + 12 * i)
        if i < 4:
            return ('a', 16 * i)
        return ('v', 124 + 16 * (i - 4))

    def consume_ops(self):
        s = self.slots[self.nc]
        assert self.nc < self.ni
        self.nc += 1
        f_, base = self.dest(s)
        off0 = s['unit'] * 1024
        ops = [lambda: g.wait_vm(s['vm'])]
        k = s['k']
        reads = []
        if k in 'q1':
            for f in range(3):
                for h in range(2):
                    if k == 'q':
                        reads.append((base + 4 * f + 2 * h, vTr96, off0 + 1536 * h + 32 * f))
                    else:
                        reads.append((base + 4 * f + 2 * h, vTr96b, off0 + 1536 * h + 8 * f))
        else:
            for f in range(4):
                for h in range(2):
                    reads.append((base + 4 * f + 2 * h, vTrA if f < 2 else vTrB, off0 + 2048 * h + 8 * (f & 1)))
        for n, (d, va, off) in enumerate(reads):
            def rd(d=d, va=va, off=off, last=(n == len(reads) - 1)):
                q = op('ds_read_b64_tr_b16 %s[%d:%d], v%d offset:%d' % (f_, d, d + 1, va, off))
                if last:
                    for x in range(s['unit'], s['unit'] + s['u']):
                        self.busy[x] = False
                        self.freeseq[x] = q
            ops.append(rd)
        return ops

    def consume(self, n=1):
        for _ in range(n):
            if self.nc >= self.ni:
                return
            for f in self.consume_ops():
                f()

    def consume_upto(self, idx):
        while self.nc < idx:
            if self.nc >= self.ni:
                self.issue(1)
            self.consume(1)

    def pump(self, limit):
        while self.nc < min(self.ni, limit):
            self.consume(1)
        while self.can_issue():
            self.issue(1)


IDX_O, IDX_1, IDX_2, IDX_END = 16, 20, 36, 47
S = Stream()


def interleave(main, side, per=1, start=0):
    side = list(side)
    for n, m in enumerate(main):
        op(m)
        if n >= start:
            for _ in range(per):
                if side:
                    side.pop(0)()
    for f in side:
        f()


poll_id = [0]


def post(val, store_seq):
    g.wait_vm(store_seq)
    op('s_barrier')
    n = poll_id[0]
    R = g.raw
    R('    s_cmp_lg_u32 s%d, 0' % sW)
    R('    s_cbranch_scc1 NOPOST_%d' % n)
    if n == 0:
        R('    s_mov_b32 s%d, 0x40000' % sSpin)
        R('INIT_%d:' % n)
        R('    v_readfirstlane_b32 s%d, v%d' % (sT0, vAnn))
        R('    s_nop 1')
        R('    s_cmp_eq_u32 s%d, 1' % sT0)
        R('    s_cbranch_scc1 INITOK_%d' % n)
        R('    buffer_load_dword v%d, off, %s, 0 sc1' % (vAnn, srd(S_DBG)))
        R('    s_waitcnt vmcnt(0)')
        R('    s_sub_u32 s%d, s%d, 1' % (sSpin, sSpin))
        R('    s_cmp_lg_u32 s%d, 0' % sSpin)
        R('    s_cbranch_scc1 INIT_%d' % n)
        R('INITOK_%d:' % n)
    R('    v_mov_b32 v%d, %d' % (vFlag, val))
    R('    s_mov_b64 exec, 1')
    R('    buffer_store_dword v%d, off, %s, s%d sc1' % (vFlag, srd(S_A), sFlagB))
    R('    s_mov_b64 exec, -1')
    R('NOPOST_%d:' % n)


def wait_flags(val):
    n = poll_id[0]
    poll_id[0] += 1
    R = g.raw
    R('    s_cmp_lg_u32 s%d, 0' % sW)
    R('    s_cbranch_scc1 DONE_%d' % n)
    R('    s_mov_b32 s%d, 0x40000' % sSpin)
    R('POLL_%d:' % n)
    R('    buffer_load_dword v%d, v%d, %s, s%d offen sc1' % (vPoll, vLane4, srd(S_A), sFlag))
    R('    s_waitcnt vmcnt(0)')
    R('    v_cmp_gt_u32 vcc, %d, v%d' % (val, vPoll))
    R('    s_nop 4')
    R('    s_cbranch_vccz DONE_%d' % n)
    R('    s_sub_u32 s%d, s%d, 1' % (sSpin, sSpin))
    R('    s_cmp_lg_u32 s%d, 0' % sSpin)
    R('    s_cbranch_scc1 POLL_%d' % n)
    R('DONE_%d:' % n)
    op('s_barrier')


g.raw('; @launch grid=(256,1,1) block=(256,1,1) lds=%d' % LDS_TOTAL)
g.raw('.amdgcn_target "amdgcn-amd-amdhsa--gfx950"')
g.raw('.text')
g.raw('.globl ' + NAME)
g.raw('.p2align 8')
g.raw('.type %s,@function' % NAME)
g.raw(NAME + ':')
op('s_cmp_ge_u32 s2, 256')
op('s_cbranch_scc1 END')
op('s_load_dwordx16 s[4:19], s[0:1], 0')
op('s_load_dwordx2 s[20:21], s[0:1], 64')
T0, T1, T2, T3, T4, T5 = 32, 33, 34, 35, 36, 37
vL = 38
op('v_and_b32 v%d, 63, v0' % vL)
op('v_lshrrev_b32 v%d, 6, v0' % T0)
op('v_and_b32 v%d, 15, v0' % vM)
op('v_bfe_u32 v%d, v0, 4, 2' % vG)
op('v_readfirstlane_b32 s%d, v%d' % (sW, T0))
op('v_lshlrev_b32 v%d, 4, v%d' % (vL16, vL))
op('s_and_b32 s%d, s2, 7' % sC)
op('s_lshr_b32 s%d, s2, 6' % sT0)
op('s_lshl_b32 s%d, s%d, 3' % (sT0, sT0))
op('s_add_u32 s%d, s%d, s%d' % (sC, sC, sT0))
op('s_bfe_u32 s%d, s2, 0x30003' % sJ)
if cfg('JX', 0):
    op('s_xor_b32 s%d, s%d, %d' % (sJ, sJ, cfg('JX', 0)))
op('s_lshl_b32 s%d, s%d, 16' % (sR, sC))
for q in range(1, 5):
    op('s_add_u32 s%d, s%d, %d' % (sXg[q], sR, (q - 1) * 16384))
op('s_lshl_b32 s%d, s%d, 2' % (sT0, sW))
op('v_add_u32 v%d, s%d, v%d' % (T0, sT0, vG))
op('v_lshlrev_b32 v%d, 10, v%d' % (T1, T0))
op('v_lshl_add_u32 v%d, v%d, 4, v%d' % (vXo, vM, T1))
vX0 = 39
op('s_sub_u32 s%d, s%d, 16384' % (sT1, sR))
op('v_add_u32 v%d, s%d, v%d' % (vX0, sT1, vXo))
g.raw('    s_waitcnt lgkmcnt(0)')


def mk_srd(b, plo, size, add=0):
    if add:
        op('s_add_u32 s%d, s%d, %d' % (b, plo, add))
        op('s_addc_u32 s%d, s%d, 0' % (b + 1, plo + 1))
        op('s_and_b32 s%d, s%d, 0xffff' % (b + 1, b + 1))
    else:
        op('s_mov_b32 s%d, s%d' % (b, plo))
        op('s_and_b32 s%d, s%d, 0xffff' % (b + 1, plo + 1))
    op('s_mov_b32 s%d, %d' % (b + 2, size))
    op('s_mov_b32 s%d, 0x00020000' % (b + 3))


mk_srd(S_X, 4, 2097152)
mk_srd(S_A, 20, 6291456 + 32768, add=4194304)
mk_srd(S_DBG, 18, 256)
g.raw('    v_mov_b32 v%d, 0' % T2)
g.raw('    v_mul_u32_u24 v%d, %d, v0' % (T3, FSTR))
g.raw('    s_mov_b32 s%d, 6291456' % sT0)
g.raw('    s_cmp_lg_u32 s2, 0')
g.raw('    s_cbranch_scc1 NOINIT')
g.raw('    buffer_store_dword v%d, v%d, %s, s%d offen sc1' % (T2, T3, srd(S_A), sT0))
g.raw('NOINIT:')
RAW = 160
for gq in range(5):
    for q in range(4):
        d = RAW + 16 * gq + 4 * q
        if gq == 0:
            op('buffer_load_dwordx4 %s, v%d, %s, 0 offen offset:%d' % (vr(d, 4), vX0, srd(S_X), q * 256))
        else:
            op('buffer_load_dwordx4 %s, v%d, %s, s%d offen offset:%d' % (vr(d, 4), vXo, srd(S_X), sXg[gq], q * 256))
mk_srd(S_WQ, 6, 1572864)
mk_srd(S_WO, 8, 524288)
mk_srd(S_W1, 12, 1409024)
mk_srd(S_W2, 14, 1409024)
op('s_lshr_b32 s%d, s2, 3' % sT0)
op('s_lshl_b32 s%d, s%d, 12' % (sT0, sT0))
op('v_lshlrev_b32 v0, 4, v0')
op('v_add_u32 v0, s%d, v0' % sT0)
FL.upto(MARG + LOOK)
op('s_mul_i32 s%d, s%d, %d' % (sRing, sW, RSTRIDE))
op('s_add_u32 s%d, s%d, %d' % (sRing, sRing, RING0))
op('s_mul_i32 s%d, s%d, 3' % (sT0, sW))
op('s_lshl_b32 s%d, s%d, 7' % (sT1, sJ))
op('s_mul_i32 s%d, s%d, 384' % (sT2, sJ))
op('s_mul_i32 s%d, s%d, 96' % (sOff, sW))
op('s_add_u32 s%d, s%d, s%d' % (sT2, sT2, sOff))
for i in range(3):
    op('v_add_u32 v%d, %d, v%d' % (T0, 64 * i, vL))
    op('v_mul_u32_u24 v%d, 171, v%d' % (T1, T0))
    op('v_lshrrev_b32 v%d, 10, v%d' % (T1, T1))
    op('v_mul_u32_u24 v%d, 6, v%d' % (T2, T1))
    op('v_sub_u32 v%d, v%d, v%d' % (T2, T0, T2))
    op('v_bfe_u32 v%d, v%d, 2, 2' % (T3, T1))
    op('v_and_b32 v%d, 3, v%d' % (T4, T1))
    op('v_lshl_add_u32 v%d, v%d, 3, v%d' % (T3, T3, T4))
    op('v_lshrrev_b32 v%d, 4, v%d' % (T4, T1))
    op('v_lshl_add_u32 v%d, v%d, 2, v%d' % (T3, T4, T3))
    op('v_lshrrev_b32 v%d, 1, v%d' % (T4, T2))
    op('v_add_u32 v%d, s%d, v%d' % (T4, sT0, T4))
    op('v_lshrrev_b32 v%d, 2, v%d' % (T5, T4))
    op('v_lshlrev_b32 v%d, 10, v%d' % (T5, T5))
    op('v_and_b32 v%d, 3, v%d' % (T4, T4))
    op('v_lshl_add_u32 v%d, v%d, 5, v%d' % (T5, T4, T5))
    op('v_and_b32 v%d, 1, v%d' % (T4, T2))
    op('v_lshl_add_u32 v%d, v%d, 4, v%d' % (T5, T4, T5))
    op('v_add_u32 v%d, s%d, v%d' % (T5, sT1, T5))
    op('v_mul_u32_u24 v%d, 3072, v%d' % (T4, T3))
    op('v_add_u32 v%d, v%d, v%d' % (T5, T5, T4))
    op('v_subrev_u32 v%d, %d, v%d' % (vDq[i], 1024 * i, T5))
    op('v_mul_u32_u24 v%d, 2752, v%d' % (T4, T3))
    op('v_lshl_add_u32 v%d, v%d, 4, v%d' % (T4, T2, T4))
    op('v_add_u32 v%d, s%d, v%d' % (T4, sT2, T4))
    op('v_subrev_u32 v%d, %d, v%d' % (vD1[i], 1024 * i, T4))
WB = 92
XB = 116
mk_srd(S_OUT, 16, 2097152)
mk_srd(S_O, 20, 2097152)
mk_srd(S_H, 20, 2097152, add=2097152)
if STAMPS:
    mk_srd(S_TS, 20, 65536, add=33554432)
stamp('start')
for t in range(4):
    op('s_add_u32 s%d, s%d, %d' % (sT0, sW, t))
    op('s_and_b32 s%d, s%d, 3' % (sT0, sT0))
    op('s_lshl_b32 s%d, s%d, 14' % (sT0, sT0))
    op('s_add_u32 s%d, s%d, s%d' % (sT[t], sR, sT0))
    op('s_mul_i32 s%d, s%d, 3' % (sTA[t], sT[t]))
op('s_mul_i32 s%d, s%d, %d' % (sFlag, sC, 8 * FSTR))
op('s_add_u32 s%d, s%d, 6291456' % (sFlag, sFlag))
op('s_mul_i32 s%d, s%d, %d' % (sT0, sJ, FSTR))
op('s_add_u32 s%d, s%d, s%d' % (sFlagB, sFlag, sT0))
op('s_mov_b32 s%d, 0x3f803f80' % sOnes)
op('s_mov_b32 s%d, 0x05040100' % sPLo)
op('s_mov_b32 s%d, 0x07060302' % sPHi)
op('s_lshl_b32 s%d, s%d, 17' % (sWoB, sW))
op('s_mul_i32 s%d, s%d, %d' % (sW2B, sW, 11 * 32768))
op('s_mov_b32 s%d, 98304' % sC98)
op('s_lshl_b32 s%d, s%d, 2' % (sT0, sW))
op('v_add_u32 v%d, s%d, v%d' % (T0, sT0, vG))
op('v_xor_b32 v%d, v%d, v%d' % (T1, vM, T0))
op('v_lshlrev_b32 v%d, 4, v%d' % (T1, T1))
op('v_lshl_add_u32 v%d, v%d, 10, v%d' % (vXTw, T0, T1))
vXTw4 = 40
op('v_add_u32 v%d, 0x10000, v%d' % (vXTw4, vXTw))
op('v_lshlrev_b32 v%d, 3, v%d' % (vStW, T0))
op('v_add_u32 v%d, %d, v%d' % (vStW, ST, vStW))
op('v_lshlrev_b32 v%d, 3, v%d' % (vStR, vM))
op('v_add_u32 v%d, %d, v%d' % (vStR, ST, vStR))
op('v_xor_b32 v%d, v%d, v%d' % (T1, vM, vG))
for b in range(4):
    op('v_xor_b32 v%d, %d, v%d' % (T2, 4 * b, T1))
    op('v_lshlrev_b32 v%d, 4, v%d' % (T2, T2))
    op('v_lshl_add_u32 v%d, v%d, 10, v%d' % (vXr[b], vM, T2))
    op('v_add_u32 v%d, 0x10000, v%d' % (vXr4[b], vXr[b]))
op('v_lshrrev_b32 v%d, 2, v%d' % (T0, vL))
op('v_and_b32 v%d, 3, v%d' % (T1, vL))
op('v_mul_u32_u24 v%d, 96, v%d' % (T2, T0))
op('v_add_u32 v%d, s%d, v%d' % (T2, sRing, T2))
op('v_lshl_add_u32 v%d, v%d, 3, v%d' % (vTr96, T1, T2))
op('v_mul_u32_u24 v%d, 24, v%d' % (T3, T1))
op('v_add_u32 v%d, v%d, v%d' % (vTr96b, T3, T2))
op('v_bfe_u32 v%d, v%d, 3, 1' % (T3, vL))
op('v_lshl_add_u32 v%d, v%d, 2, v%d' % (T3, T3, T1))
op('v_lshlrev_b32 v%d, 4, v%d' % (T3, T3))
op('v_lshl_add_u32 v%d, v%d, 7, v%d' % (T3, T0, T3))
op('v_xor_b32 v%d, 64, v%d' % (T4, T3))
op('v_add_u32 v%d, s%d, v%d' % (vTrA, sRing, T3))
op('v_add_u32 v%d, s%d, v%d' % (vTrB, sRing, T4))
op('v_lshrrev_b32 v%d, 5, v%d' % (T0, vL))
op('v_bfe_u32 v%d, v%d, 3, 2' % (T1, vL))
op('v_lshl_add_u32 v%d, v%d, 3, v%d' % (T0, T0, T1))
op('v_and_b32 v%d, 7, v%d' % (T1, vL))
op('v_bfe_u32 v%d, v%d, 4, 1' % (T2, vL))
op('v_lshlrev_b32 v%d, 2, v%d' % (T2, T2))
op('v_xor_b32 v%d, v%d, v%d' % (T1, T1, T2))
op('v_lshlrev_b32 v%d, 4, v%d' % (T1, T1))
op('v_lshl_add_u32 v%d, v%d, 10, v%d' % (T0, T0, T1))
op('s_lshl_b32 s%d, s%d, 7' % (sT1, sJ))
op('v_add_u32 v%d, s%d, v%d' % (T0, sT1, T0))
for i in range(4):
    op('v_add_u32 v%d, %d, v%d' % (vD2[i], (16 * (i & 1) + 4 * (i >> 1) - i) * 1024, T0))
op('s_lshl_b32 s%d, s%d, 8' % (sT0, sW))
op('v_lshlrev_b32 v%d, 4, v%d' % (T0, vG))
op('v_lshl_add_u32 v%d, v%d, 10, v%d' % (T0, vM, T0))
op('s_lshl_b32 s%d, s%d, 12' % (sT0, sW))
op('v_add_u32 v%d, s%d, v%d' % (vOf, sT0, vL16))
op('s_add_u32 s%d, s%d, s%d' % (sT0, sT1, sT[0]))
op('v_add_u32 v%d, s%d, v%d' % (vHs, sT0, T0))


def stage(raw, ngroups, ones_row):
    for x in range(2 * ngroups):
        op('v_mov_b32 v%d, 0' % (SA + x))
    for gq in range(ngroups):
        for q in range(4):
            d = raw + 16 * gq + 4 * q
            if ones_row and gq == 0:
                op('s_cmp_eq_u32 s%d, 0' % sW)
                op('s_cselect_b32 s%d, 0xffff, 0' % sT0)
                g.wait_vm(g.pend[('v', d)][1])
                op('s_mov_b32 exec_lo, s%d' % sT0)
                op('s_mov_b32 exec_hi, 0')
                for x in range(4):
                    op('v_mov_b32 v%d, s%d' % (d + x, sOnes))
                op('s_mov_b64 exec, -1')
            if gq < 4:
                op('ds_write_b128 v%d, %s offset:%d' % (vXTw, vr(d, 4), gq * 16384 + q * 256))
            else:
                op('ds_write_b128 v%d, %s offset:%d' % (vXTw4, vr(d, 4), q * 256))
            for x in range(4):
                op('v_dot2c_f32_bf16 v%d, s%d, v%d' % (SA + 2 * gq, sOnes, d + x))
                op('v_dot2c_f32_bf16 v%d, v%d, v%d' % (SA + 2 * gq + 1, d + x, d + x))


def stats_final_ops(ngroups, tmp):
    L = []
    A = lambda s: L.append(lambda: op(s))
    for ror in (8, 4, 2, 1):
        for x in range(2 * ngroups):
            A('v_add_f32_dpp v%d, v%d, v%d row_ror:%d row_mask:0xf bank_mask:0xf' % (SA + x, SA + x, SA + x, ror))
    for gq in range(ngroups):
        s, q = SA + 2 * gq, SA + 2 * gq + 1
        A('v_mul_f32 v%d, 0xbb000000, v%d' % (s, s))
        A('v_mul_f32 v%d, 0x3b000000, v%d' % (q, q))
    for gq in range(ngroups):
        s, q = SA + 2 * gq, SA + 2 * gq + 1
        A('v_fma_f32 v%d, -v%d, v%d, v%d' % (q, s, s, q))
        A('v_max_f32 v%d, 0, v%d' % (q, q))
        A('v_add_f32 v%d, 0x3727c5ac, v%d' % (q, q))
    for gq in range(ngroups):
        A('v_rsq_f32 v%d, v%d' % (SA + 2 * gq + 1, SA + 2 * gq + 1))
    for gq in range(ngroups):
        A('ds_write_b64 v%d, %s offset:%d' % (vStW, vr(SA + 2 * gq, 2), gq * 128))
    return L


def xread_ops(ks, buf, ntiles):
    L = []
    a, b = ks >> 2, ks & 3
    for t in range(ntiles):
        d = buf + 4 * t
        if t < 4:
            s = 'ds_read_b128 %s, v%d offset:%d' % (vr(d, 4), vXr[b], t * 16384 + a * 256)
        else:
            s = 'ds_read_b128 %s, v%d offset:%d' % (vr(d, 4), vXr4[b], a * 256)
        L.append(lambda s=s: op(s))
    return L


stage(RAW, 5, True)
g.wait_all_lg()
S.issue(1)
op('s_barrier')
g.raw('    s_cmp_lg_u32 s2, 0')
g.raw('    s_cbranch_scc1 NOANN')
g.raw('    s_cmp_lg_u32 s%d, 0' % sW)
g.raw('    s_cbranch_scc1 NOANN')
g.raw('    v_mov_b32 v%d, 1' % T2)
g.raw('    s_mov_b64 exec, 1')
g.raw('    buffer_store_dword v%d, off, %s, 0 sc1' % (T2, srd(S_DBG)))
g.raw('    s_mov_b64 exec, -1')
g.raw('NOANN:')
stamp('x staged')
ACC = 32
for f in xread_ops(0, XB, 5):
    f()
S.issue(5)
S.consume(1)
fin = stats_final_ops(5, None)
for ks in range(16):
    wb = WB + 12 * (ks & 1)
    xb = XB + 20 * (ks & 1)
    main = []
    for t in range(5):
        for f in range(3):
            d = ACC + 12 * t + 4 * f
            c = '0' if ks == 0 else vr(d, 4)
            main.append('v_mfma_f32_16x16x32_bf16 %s, %s, %s, %s' % (vr(d, 4), vr(wb + 4 * f, 4), vr(xb + 4 * t, 4), c))
    g.wait_all_lg()
    if ks == 15:
        op('s_barrier')
    op(main[0])
    side = []
    if ks < 15:
        side += xread_ops(ks + 1, XB + 20 * ((ks + 1) & 1), 5)
        side += S.consume_ops()
    if S.can_issue():
        side += S.issue_ops()
    elif ks >= cfg('XF', 16):
        side += FL.upto_ops(FL.n)
    n = 12 if ks >= 1 else 0
    side += fin[:n]
    fin = fin[n:]
    interleave(main[1:], side, per=2)
assert not fin
stamp('p1 gemm')
op('buffer_load_dword v%d, off, %s, 0 sc1' % (vAnn, srd(S_DBG)))
op('v_bfe_u32 v%d, v%d, 4, 3' % (vLane4, vL16))
op('v_mul_u32_u24 v%d, %d, v%d' % (vLane4, FSTR, vLane4))
op('buffer_load_dwordx4 %s, v%d, %s, 0 offen' % (vr(HT, 4), vHs, srd(S_X)))
op('buffer_load_dwordx4 %s, v%d, %s, 0 offen offset:64' % (vr(HT + 4, 4), vHs, srd(S_X)))
S.look = False
S.limit = IDX_1
while S.can_issue():
    S.issue(1)
FL.cap = 26
FL.upto(26)
CS = 92
STP = 104
for t in range(5):
    op('ds_read_b64 %s, v%d offset:%d' % (vr(STP + 2 * t, 2), vStR, t * 128))
for x in range(12):
    op('v_mov_b32_dpp v%d, v%d row_newbcast:0 row_mask:0xf bank_mask:0xf' % (CS + x, ACC + x))
vQw = 116
op('s_mul_i32 s%d, s%d, 11520' % (sT0, sW))
op('v_mul_u32_u24 v%d, 48, v%d' % (vQw, vM))
op('v_lshl_add_u32 v%d, v%d, 3, v%d' % (vQw, vG, vQw))
op('v_add_u32 v%d, s%d, v%d' % (vQw, sT0, vQw))
PK = 120
for t in range(5):
    st = vr(STP + 2 * t, 2)
    for f in range(3):
        d = ACC + 12 * t + 4 * f
        for hh in range(2):
            op('v_pk_fma_f32 %s, %s, %s, %s op_sel:[0,0,0] op_sel_hi:[1,0,1]' % (
                vr(d + 2 * hh, 2), vr(CS + 4 * f + 2 * hh, 2), st, vr(d + 2 * hh, 2)))
    for f in range(3):
        d = ACC + 12 * t + 4 * f
        for hh in range(2):
            op('v_pk_mul_f32 %s, %s, %s op_sel:[0,1] op_sel_hi:[1,1]' % (vr(d + 2 * hh, 2), vr(d + 2 * hh, 2), st))
    for f in range(3):
        d = ACC + 12 * t + 4 * f
        p = PK + 6 * (t & 1) + 2 * f
        op('v_cvt_pk_bf16_f32 v%d, v%d, v%d' % (p, d, d + 1))
        op('v_cvt_pk_bf16_f32 v%d, v%d, v%d' % (p + 1, d + 2, d + 3))
        op('ds_write_b64 v%d, %s offset:%d' % (vQw, vr(p, 2), f * 3840 + t * 768))
S.limit = IDX_2
S.pump(IDX_2)
g.wait_all_lg()
op('s_barrier')
stamp('qkv')
AQ, AK, AV, AS_, AO, AT, AP, AOP = 32, 40, 104, 168, 176, 192, 208, 212
vK = 220
vRow = 221
vOs = 222
op('v_lshrrev_b32 v%d, 4, v%d' % (vRow, vL16))
op('s_mul_i32 s%d, s%d, 3840' % (sT0, sW))
op('v_mul_u32_u24 v%d, 48, v%d' % (vK, vRow))
op('v_add_u32 v%d, s%d, v%d' % (vK, sT0, vK))
for hh in range(2):
    op('ds_read_b128 %s, v%d offset:%d' % (vr(AQ + 4 * hh, 4), vK, 96 + 672 + 16 * hh))
for i in range(8):
    for hh in range(2):
        op('ds_read_b128 %s, v%d offset:%d' % (vr(AK + 8 * i + 4 * hh, 4), vK, 96 + 15360 + (14 - 2 * i) * 48 + 16 * hh))
for i in range(8):
    op('v_mov_b32 v%d, 0' % (AS_ + i))
for x in range(16):
    op('v_mov_b32 v%d, 0' % (AO + x))
op('s_lshl_b32 s%d, s%d, 11' % (sT0, sJ))
op('s_lshl_b32 s%d, s%d, 9' % (sT1, sW))
op('s_add_u32 s%d, s%d, s%d' % (sT0, sT0, sT1))
op('s_add_u32 s%d, s%d, s%d' % (sT0, sT0, sR))
op('v_lshlrev_b32 v%d, 14, v%d' % (vOs, vG))
op('v_lshl_add_u32 v%d, v%d, 4, v%d' % (vOs, vM, vOs))
op('v_add_u32 v%d, s%d, v%d' % (vOs, sT0, vOs))
for i in range(8):
    for d in range(8):
        op('v_dot2c_f32_bf16 v%d, v%d, v%d' % (AS_ + i, AQ + d, AK + 8 * i + d))
    for hh in range(2):
        op('ds_read_b128 %s, v%d offset:%d' % (vr(AV + 8 * i + 4 * hh, 4), vK, 96 + 30720 + (14 - 2 * i) * 48 + 16 * hh))
op('s_cmp_lg_u32 s%d, 0' % sC)
op('s_nop 3')
op('s_cbranch_scc1 NOMASK')
op('v_mov_b32 v%d, 0xff800000' % AT)
for i in range(1, 8):
    op('v_cmp_gt_u32 vcc, %d, v%d' % (2 * i, vRow))
    op('v_cndmask_b32 v%d, v%d, v%d, vcc' % (AS_ + i, AS_ + i, AT))
g.label('NOMASK')
CEXP = 0x3eb8aa3b
op('v_max3_f32 v%d, v%d, v%d, v%d' % (AT, AS_, AS_ + 1, AS_ + 2))
op('v_max3_f32 v%d, v%d, v%d, v%d' % (AT + 1, AS_ + 3, AS_ + 4, AS_ + 5))
op('v_max3_f32 v%d, v%d, v%d, v%d' % (AT, AT, AS_ + 6, AS_ + 7))
op('v_max_f32 v%d, v%d, v%d' % (AT, AT, AT + 1))
op('s_mov_b32 s%d, 0x%x' % (sT0, CEXP))
op('v_mul_f32 v%d, s%d, v%d' % (AT, sT0, AT))
for i in range(8):
    op('v_fma_f32 v%d, v%d, s%d, -v%d' % (AS_ + i, AS_ + i, sT0, AT))
for i in range(8):
    op('v_exp_f32 v%d, v%d' % (AS_ + i, AS_ + i))
op('v_pk_add_f32 %s, %s, %s' % (vr(AT, 2), vr(AS_, 2), vr(AS_ + 2, 2)))
op('v_pk_add_f32 %s, %s, %s' % (vr(AT + 2, 2), vr(AS_ + 4, 2), vr(AS_ + 6, 2)))
op('v_pk_add_f32 %s, %s, %s' % (vr(AT, 2), vr(AT, 2), vr(AT + 2, 2)))
op('v_add_f32 v%d, v%d, v%d' % (AT, AT, AT + 1))
op('v_rcp_f32 v%d, v%d' % (AT, AT))
for i in range(4):
    op('v_pk_mul_f32 %s, %s, %s op_sel:[0,0] op_sel_hi:[1,0]' % (vr(AS_ + 2 * i, 2), vr(AS_ + 2 * i, 2), vr(AT, 2)))
for i in range(4):
    op('v_cvt_pk_bf16_f32 v%d, v%d, v%d' % (AP + i, AS_ + 2 * i, AS_ + 2 * i + 1))
for i in range(4):
    va, vb = AV + 16 * i, AV + 16 * i + 8
    for half in range(2):
        for d in range(4 * half, 4 * half + 4):
            op('v_perm_b32 v%d, v%d, v%d, s%d' % (AT + 2 * (d & 3), vb + d, va + d, sPLo))
            op('v_perm_b32 v%d, v%d, v%d, s%d' % (AT + 2 * (d & 3) + 1, vb + d, va + d, sPHi))
        for d in range(4 * half, 4 * half + 4):
            op('v_dot2c_f32_bf16 v%d, v%d, v%d' % (AO + 2 * d, AP + i, AT + 2 * (d & 3)))
            op('v_dot2c_f32_bf16 v%d, v%d, v%d' % (AO + 2 * d + 1, AP + i, AT + 2 * (d & 3) + 1))
for d in range(8):
    op('v_cvt_pk_bf16_f32 v%d, v%d, v%d' % (AOP + d, AO + 2 * d, AO + 2 * d + 1))
op('buffer_store_dwordx4 %s, v%d, %s, 0 offen sc1' % (vr(AOP, 4), vOs, srd(S_O)))
q = op('buffer_store_dwordx4 %s, v%d, %s, 0 offen offset:256 sc1' % (vr(AOP + 4, 4), vOs, srd(S_O)))
stamp('attn')
op('s_mul_i32 s%d, s%d, 11264' % (sT0, sW))
op('v_add_u32 v%d, s%d, v%d' % (vAf, sT0, vL16))
op('v_add_u32 v%d, 4096, v%d' % (vAf2[1], vAf))
op('v_add_u32 v%d, 8192, v%d' % (vAf2[2], vAf))
op('v_and_b32 v%d, 1, v%d' % (T0, vG))
op('v_mul_u32_u24 v%d, 49152, v%d' % (T0, T0))
op('v_lshrrev_b32 v%d, 1, v%d' % (T1, vG))
op('v_mul_u32_u24 v%d, 768, v%d' % (T1, T1))
op('v_add_u32 v%d, v%d, v%d' % (T0, T0, T1))
op('v_lshl_add_u32 v%d, v%d, 4, v%d' % (T0, vM, T0))
op('s_mul_i32 s%d, s%d, 3' % (sT0, sR))
op('s_lshl_b32 s%d, s%d, 4' % (sT1, sT2))
op('s_add_u32 s%d, s%d, s%d' % (sT0, sT0, sT1))
op('v_add_u32 v%d, s%d, v%d' % (vAs, sT0, T0))
for q_ in range(4):
    op('s_add_u32 s%d, s%d, %d' % (sXg[q_ + 1], sT[0], 4096 * q_))
op('s_lshl_b32 s%d, s%d, 14' % (sT0, sW))
op('v_add_u32 v%d, s%d, v%d' % (vXTw, sT0, vL16))
op('s_lshl_b32 s%d, s%d, 7' % (sT0, sW))
op('v_add_u32 v%d, s%d, v%d' % (vStW, sT0, vStR))
vRw = [None, 16, 6, 7]
post(1, q)
S.pump(IDX_2)
S.pump(IDX_2)


def ksplit_phase(nks, bfrag, afrag, loads, rdbuf, final, pump_after_loads, pump_after_mfma):
    ACC = 32
    for f in loads:
        f()
    pump_after_loads()
    order = (1, 2, 3, 0)
    RW = 96
    for n, tau in enumerate((1, 2, 3)):
        op('s_add_u32 s%d, s%d, %d' % (sT0, sW, tau))
        op('s_and_b32 s%d, s%d, 3' % (sT0, sT0))
        op('s_mul_i32 s%d, s%d, 12288' % (sT0, sT0))
        op('v_add_u32 v%d, s%d, v%d' % (RW + n, sT0, vL16))
    op('s_mul_i32 s%d, s%d, 12288' % (sT0, sW))
    op('v_add_u32 v%d, s%d, v%d' % (RW + 3, sT0, vL16))
    pendw = []
    for tau in order:
        main = []
        for ks in range(nks):
            for f in range(4):
                d = ACC + 16 * tau + 4 * f
                c = '0' if ks == 0 else vr(d, 4)
                main.append('v_mfma_f32_16x16x32_bf16 %s, %s, %s, %s' % (vr(d, 4), afrag(ks, f), bfrag(tau, ks), c))
        interleave(main, pendw, per=1, start=4)
        pendw = []
        if tau != 0:
            for f in range(4):
                s = 'ds_write_b128 v%d, %s offset:%d' % (RW + tau - 1, vr(ACC + 16 * tau + 4 * f, 4), (tau - 1) * 4096 + f * 1024)
                pendw.append(lambda s=s: op(s))
    g.wait_all_lg()
    op('s_barrier')
    for sl in range(3):
        for f in range(4):
            op('ds_read_b128 %s, v%d offset:%d' % (vr(rdbuf + 16 * sl + 4 * f, 4), RW + 3, sl * 4096 + f * 1024))
    pump_after_mfma()
    U = 100
    for x in range(8):
        op('v_lshlrev_b32 v%d, 16, v%d' % (U + 2 * x, HT + x))
        op('v_and_b32 v%d, 0xffff0000, v%d' % (U + 2 * x + 1, HT + x))
    for x in range(8):
        op('v_pk_add_f32 %s, %s, %s' % (vr(ACC + 2 * x, 2), vr(ACC + 2 * x, 2), vr(U + 2 * x, 2)))
    for sl in range(3):
        for x in range(8):
            op('v_pk_add_f32 %s, %s, %s' % (vr(ACC + 2 * x, 2), vr(ACC + 2 * x, 2), vr(rdbuf + 16 * sl + 2 * x, 2)))
    for x in range(8):
        op('v_cvt_pk_bf16_f32 v%d, v%d, v%d' % (HT + x, ACC + 2 * x, ACC + 2 * x + 1))
    return final()


wait_flags(1)
stamp('flag1')
OF = 124
loads = []
for tau in (1, 2, 3, 0):
    for ks in range(4):
        s = 'buffer_load_dwordx4 %s, v%d, %s, s%d offen offset:%d sc1' % (vr(OF + 16 * tau + 4 * ks, 4), vOf, srd(S_O), sT[tau], ks * 1024)
        loads.append(lambda s=s: op(s))


def p2_final():
    op('s_lshl_b32 s%d, s%d, 11' % (sT0, sJ))
    op('s_add_u32 s%d, s%d, s%d' % (sT0, sT0, sT[0]))
    op('buffer_store_dwordx4 %s, v%d, %s, s%d offen sc1' % (vr(HT, 4), vL16, srd(S_H), sT0))
    return op('buffer_store_dwordx4 %s, v%d, %s, s%d offen offset:1024 sc1' % (vr(HT + 4, 4), vL16, srd(S_H), sT0))


def p2_after_loads():
    FL.cap = 37
    FL.upto(37)
    S.pump(IDX_2)


S.consume_upto(IDX_1)
q = ksplit_phase(4, lambda tau, ks: vr(OF + 16 * tau + 4 * ks, 4), lambda ks, f: ar(16 * ks + 4 * f, 4), loads, 188,
                 p2_final, p2_after_loads, lambda: None)
stamp('p2')
post(2, q)
S.limit = IDX_END
S.pump(IDX_END)
S.consume_upto(IDX_2)
CS3 = 112
ONE = 96
for x in range(4):
    op('v_mov_b32 v%d, s%d' % (ONE + x, sOnes))
for ks in range(16):
    for f in range(3):
        c = '0' if ks == 0 else vr(CS3 + 4 * f, 4)
        op('v_mfma_f32_16x16x32_bf16 %s, %s, %s, %s' % (vr(CS3 + 4 * f, 4), ar(64 + 12 * ks + 4 * f, 4), vr(ONE, 4), c))

wait_flags(2)
stamp('flag2')
RAWH = 32
for gq in range(4):
    for q in range(4):
        op('buffer_load_dwordx4 %s, v%d, %s, s%d offen offset:%d sc1' % (
            vr(RAWH + 16 * gq + 4 * q, 4), vL16, srd(S_H), sXg[gq + 1], q * 1024))
S.pump(IDX_END)
for x in range(8):
    op('v_mov_b32 v%d, 0' % (SA + x))
for gq in range(4):
    for q in range(4):
        d = RAWH + 16 * gq + 4 * q
        op('ds_write_b128 v%d, %s offset:%d' % (vXTw, vr(d, 4), gq * 4096 + q * 1024))
        for x in range(4):
            op('v_dot2c_f32_bf16 v%d, s%d, v%d' % (SA + 2 * (x & 1) + 4 * (q & 1), sOnes, d + x))
            op('v_dot2c_f32_bf16 v%d, v%d, v%d' % (SA + 2 * (x & 1) + 4 * (q & 1) + 1, d + x, d + x))
g.wait_all_lg()
op('s_barrier')
stamp('h staged')
HB = 80


def hread_ops(ks, buf):
    L = []
    for t in range(4):
        s_ = 'ds_read_b128 %s, v%d offset:%d' % (vr(buf + 4 * t, 4), vL16, t * 16384 + ks * 1024)
        L.append(lambda s_=s_: op(s_))
    return L


for f in hread_ops(0, HB):
    f()
fin = []
FA = lambda s_: fin.append(lambda: op(s_))
FA('v_pk_add_f32 %s, %s, %s' % (vr(SA, 2), vr(SA, 2), vr(SA + 2, 2)))
FA('v_pk_add_f32 %s, %s, %s' % (vr(SA + 4, 2), vr(SA + 4, 2), vr(SA + 6, 2)))
FA('v_pk_add_f32 %s, %s, %s' % (vr(SA, 2), vr(SA, 2), vr(SA + 4, 2)))
FA('v_permlane32_swap_b32 v%d, v%d' % (SA, SA + 1))
FA('v_add_f32 v%d, v%d, v%d' % (SA, SA, SA + 1))
FA('v_mov_b32 v%d, v%d' % (SA + 1, SA))
FA('v_permlane16_swap_b32 v%d, v%d' % (SA, SA + 1))
FA('v_add_f32 v%d, v%d, v%d' % (SA, SA, SA + 1))
FA('v_mov_b32 v%d, v%d' % (SA + 1, SA))
FA('v_permlane32_swap_b32 v%d, v%d' % (SA, SA + 1))
FA('v_mul_f32 v%d, 0xbb000000, v%d' % (SA, SA))
FA('v_mul_f32 v%d, 0x3b000000, v%d' % (SA + 1, SA + 1))
FA('v_fma_f32 v%d, -v%d, v%d, v%d' % (SA + 1, SA, SA, SA + 1))
FA('v_max_f32 v%d, 0, v%d' % (SA + 1, SA + 1))
FA('v_add_f32 v%d, 0x3727c5ac, v%d' % (SA + 1, SA + 1))
FA('v_rsq_f32 v%d, v%d' % (SA + 1, SA + 1))
FA('ds_write_b64 v%d, %s' % (vStW, vr(SA, 2)))
for ks in range(16):
    hb = HB + 16 * (ks & 1)
    main = []
    for t in range(4):
        for f in range(3):
            d = ACC + 12 * t + 4 * f
            c = '0' if ks == 0 else vr(d, 4)
            main.append('v_mfma_f32_16x16x32_bf16 %s, %s, %s, %s' % (vr(d, 4), ar(64 + 12 * ks + 4 * f, 4), vr(hb + 4 * t, 4), c))
    g.wait_all_lg()
    if ks == 8:
        op('s_barrier')
    op(main[0])
    side = []
    if ks < 15:
        side += hread_ops(ks + 1, HB + 16 * ((ks + 1) & 1))
    n = 6 if ks >= 1 else 0
    side += fin[:n]
    fin = fin[n:]
    if ks == 12:
        for t in range(4):
            s = 'ds_read_b64 %s, v%d offset:%d' % (vr(SA + 2 * t, 2), vStR, t * 128)
            side.append(lambda s=s: op(s))
    interleave(main[1:], side, per=1)
assert not fin
stamp('p3 gemm')
PK = 80
for t in range(4):
    st = vr(SA + 2 * t, 2)
    for f in range(3):
        d = ACC + 12 * t + 4 * f
        for hh in range(2):
            op('v_pk_fma_f32 %s, %s, %s, %s op_sel:[0,0,0] op_sel_hi:[1,0,1]' % (
                vr(d + 2 * hh, 2), vr(CS3 + 4 * f + 2 * hh, 2), st, vr(d + 2 * hh, 2)))
    for f in range(3):
        d = ACC + 12 * t + 4 * f
        for hh in range(2):
            op('v_pk_mul_f32 %s, %s, %s op_sel:[0,1] op_sel_hi:[1,1]' % (vr(d + 2 * hh, 2), vr(d + 2 * hh, 2), st))
    for x in range(6):
        d = ACC + 12 * t + 2 * x
        op('v_cvt_pk_bf16_f32 v%d, v%d, v%d' % (PK + 6 * t + x, d, d + 1))
    for x in range(6):
        op('v_pk_max_i16 v%d, v%d, 0' % (PK + 6 * t + x, PK + 6 * t + x))
    if t & 1:
        b = PK + 6 * (t - 1)
        for x in range(6):
            op('v_permlane16_swap_b32 v%d, v%d' % (b + x, b + 6 + x))
        for x in range(3):
            q = op('buffer_store_dwordx4 %s, v%d, %s, %s offen offset:%d sc1' % (
                vr(b + 4 * x, 4), vAs, srd(S_A), ('0' if t == 1 else 's%d' % sC98), 256 * x))
stamp('p3')
S.pump(IDX_END)
post(3, q)
S.pump(IDX_END)
S.consume_upto(IDX_END)

wait_flags(3)
stamp('flag3')
loads = []
for tau in (1, 2, 3, 0):
    for t in range(11):
        s = 'buffer_load_dwordx4 %s, v%d, %s, s%d offen offset:%d sc1' % (ar(64 + 44 * tau + 4 * t, 4), vAf2[t >> 2], srd(S_A), sTA[tau], (t & 3) * 1024)
        loads.append(lambda s=s: op(s))


def w2frag(t, f):
    return ar(16 * t + 4 * f, 4) if t < 4 else vr(124 + 16 * (t - 4) + 4 * f, 4)


def p4_final():
    op('buffer_store_dwordx4 %s, v%d, %s, 0 offen' % (vr(HT, 4), vHs, srd(S_OUT)))
    return op('buffer_store_dwordx4 %s, v%d, %s, 0 offen offset:64' % (vr(HT + 4, 4), vHs, srd(S_OUT)))


ksplit_phase(11, lambda tau, t: ar(64 + 44 * tau + 4 * t, 4), w2frag, loads, 124, p4_final, lambda: None, lambda: None)
stamp('end')
if STAMPS:
    g.raw('    s_waitcnt lgkmcnt(0)')
    op('s_lshl_b32 s%d, s2, 2' % sT0)
    op('s_add_u32 s%d, s%d, s%d' % (sT0, sT0, sW))
    op('s_lshl_b32 s%d, s%d, 6' % (sT0, sT0))
    op('s_mov_b64 exec, 1')
    for n in range(stamp_n[0]):
        op('v_mov_b32 v%d, s%d' % (32 + n, stamp_regs[n]))
        op('buffer_store_dword v%d, off, %s, s%d offset:%d' % (32 + n, srd(S_TS), sT0, 4 * n))
g.raw('END:')
g.raw('    s_endpgm')
g.raw('.section .rodata,"a"')
g.raw('.p2align 6')
g.raw('.amdhsa_kernel ' + NAME)
g.raw('  .amdhsa_next_free_vgpr 512')
g.raw('  .amdhsa_next_free_sgpr 102')
g.raw('  .amdhsa_accum_offset 256')
g.raw('  .amdhsa_group_segment_fixed_size 0')
g.raw('  .amdhsa_kernarg_size 72')
g.raw('  .amdhsa_user_sgpr_count 2')
g.raw('  .amdhsa_user_sgpr_kernarg_segment_ptr 1')
g.raw('  .amdhsa_system_sgpr_workgroup_id_x 1')
g.raw('.end_amdhsa_kernel')
txt = g.text()
if cfg('PL', 0) or cfg('PS', 0):
    L = []
    for ln in txt.split('\n'):
        if cfg('PL', 0) and 'buffer_load_dwordx4' in ln and ln.endswith(' sc1'):
            ln = ln[:-4]
        if cfg('PS', 0) and 'buffer_store_dwordx4' in ln and ln.endswith(' sc1'):
            ln = ln[:-4]
        L.append(ln)
    txt = '\n'.join(L)
open(OUT, 'w').write(txt)
print('instructions', g.ninstr, 'nops', g.nops, 'slots issued', S.ni, 'consumed', S.nc)
```

```python
import sys
from asmgen import Gen

NAME = 'sequential_preLN__sliding_local_dilated__dense_activation_relu__prompt_kernel'
STAMPS = '--stamps' in sys.argv
OUT = 'cdna_kernels/sequential_preLN__sliding_local_dilated__dense_activation_relu__prompt.s'
for a in sys.argv[1:]:
    if a.startswith('--out='):
        OUT = a[6:]
CFG = {}
for a in sys.argv[1:]:
    if a.startswith('-D'):
        k, v = a[2:].split('=')
        CFG[k] = int(v)


def cfg(k, d):
    return CFG.get(k, d)


g = Gen()
op = g.op

RING0 = 81920
RUNITS = 19
RSTRIDE = RUNITS * 1024
ST = RING0 + 4 * RSTRIDE
FDUMP = ST + 640
LDS_TOTAL = FDUMP + 1024

S_X, S_WQ, S_WO, S_W1, S_W2, S_OUT, S_DBG, S_O, S_H, S_A = [24 + 4 * i for i in range(10)]
sW, sC, sJ, sR = 64, 65, 66, 67
sXg = [None, 68, 69, 70, 71]
sT = [72, 73, 74, 75]
sTA = [76, 77, 78, 79]
sRing, sOff, sFlag, sSpin, sT0, sT1, sOnes, sPLo, sPHi, sWoB, sW2B, sT2 = range(80, 92)
sFlagB = 92
sC98 = 93
sQ = 3
S_TS = 96


def srd(b):
    return 's[%d:%d]' % (b, b + 3)


def vr(b, n=1):
    return 'v%d' % b if n == 1 else 'v[%d:%d]' % (b, b + n - 1)


def ar(b, n=1):
    return 'a%d' % b if n == 1 else 'a[%d:%d]' % (b, b + n - 1)


vL16, vM, vG, vXo, vXTw = 1, 2, 3, 4, 5
vXr = [6, 7, 8, 9]
vXr4 = [10, 11, 12, 13]
vDq = [14, 15, 16]
vD1 = [17, 18, 19]
vD2 = [20, 21, 22, 23]
vTr96, vTr96b, vTrA, vTrB = 24, 25, 26, 27
vOf, vStR, vStW, vHs = 28, 29, 30, 31
vAf = 14
vAs = 15
vAf2 = [14, 16, 4]
vPoll = 10
vFlag = 12
vLane4 = 13
vAnn = 11
FSTR = cfg('FSTR', 128)
HT = 238
SA = 246

stamp_regs = [4, 6, 8, 10, 12, 14, 16, 18, 20, 22, 94, 100, 0]
stamp_n = [0]


import os
DEFSET = 'start,x staged,p1 gemm,qkv,attn,flag1,p2,flag2,h staged,p3 gemm,p3,flag3,end'
STAMPSET = os.environ.get('SS', DEFSET).split(',')


def stamp(name):
    if not STAMPS or name not in STAMPSET:
        return
    r = stamp_regs[stamp_n[0]]
    stamp_n[0] += 1
    g.comment('stamp ' + name)
    op('%s s[%d:%d]' % ('s_memrealtime' if cfg('RT', 0) else 's_memtime', r, r + 1))


def slot_off(k, i):
    if k in 'q1':
        step = 98304 if k == 'q' else 88064
        op('s_add_u32 s%d, s%d, %d' % (sOff, sQ, i >> 2))
        op('s_and_b32 s%d, s%d, 3' % (sOff, sOff))
        op('s_mul_i32 s%d, s%d, %d' % (sOff, sOff, step))
        if i & 3:
            op('s_add_u32 s%d, s%d, %d' % (sOff, sOff, (i & 3) * 4 * step))
    elif k == 'o':
        op('s_add_u32 s%d, s%d, %d' % (sOff, sQ, i))
        op('s_and_b32 s%d, s%d, 3' % (sOff, sOff))
        op('s_lshl_b32 s%d, s%d, 15' % (sOff, sOff))
        op('s_add_u32 s%d, s%d, s%d' % (sOff, sOff, sWoB))
    else:
        op('s_cmp_ge_u32 s%d, %d' % (sQ, (11 - i + 2) // 3))
        op('s_cselect_b32 s%d, %d, 0' % (sOff, 11 * 32768))
        op('s_sub_u32 s%d, s%d, s%d' % (sOff, sW2B, sOff))
        if i:
            op('s_add_u32 s%d, s%d, %d' % (sOff, sOff, i * 32768))


class Stream:
    def __init__(self):
        order = [('q', n) for n in range(16)] + [('o', 0)] + [('1', n) for n in range(4)] + \
                [('o', n) for n in range(1, 4)] + [('1', n) for n in range(4, 16)] + [('2', n) for n in range(11)]
        self.slots = [dict(k=k, i=i, u=(3 if k in 'q1' else 4)) for k, i in order]
        self.ni = 0
        self.nc = 0
        self.busy = [False] * RUNITS
        self.freeseq = [0] * RUNITS
        self.head = 0
        self.limit = 16

    def find(self, u):
        for st in list(range(self.head, RUNITS)) + list(range(0, self.head)):
            if st + u <= RUNITS and not any(self.busy[st:st + u]):
                return st
        return None

    def can_issue(self):
        return self.ni < min(self.limit, len(self.slots)) and self.find(self.slots[self.ni]['u']) is not None

    def issue_ops(self):
        s = self.slots[self.ni]
        st = self.find(s['u'])
        assert st is not None
        self.ni += 1
        for x in range(st, st + s['u']):
            self.busy[x] = True
        self.head = (st + s['u']) % RUNITS
        s['unit'] = st
        need = max(self.freeseq[st:st + s['u']])
        k, i = s['k'], s['i']
        ops = []

        def setup():
            g.wait_lg(need)
            op('s_add_u32 m0, s%d, %d' % (sRing, st * 1024))
            slot_off(k, i)
        ops.append(setup)
        va = {'q': vDq, '1': vD1, 'o': vD2, '2': vD2}[k]
        sd = {'q': S_WQ, '1': S_W1, 'o': S_WO, '2': S_W2}[k]
        for n in range(s['u']):
            def dma(n=n):
                s['vm'] = op('buffer_load_dwordx4 v%d, %s, s%d offen offset:%d lds' % (va[n], srd(sd), sOff, n * 1024))
            ops.append(dma)
        return ops

    def index(self, k, i):
        return [n for n, s in enumerate(self.slots) if s['k'] == k and s['i'] == i][0]

    def issue(self, n=1):
        for _ in range(n):
            if not self.can_issue():
                return
            for f in self.issue_ops():
                f()

    def dest(self, s):
        k, i = s['k'], s['i']
        if k == 'q':
            return ('v', WB + 12 * (i & 1))
        if k == 'o':
            return ('a', 16 * i)
        if k == '1':
            return ('a', 64 + 12 * i)
        if i < 4:
            return ('a', 16 * i)
        return ('v', 124 + 16 * (i - 4))

    def consume_ops(self):
        s = self.slots[self.nc]
        assert self.nc < self.ni
        self.nc += 1
        f_, base = self.dest(s)
        off0 = s['unit'] * 1024
        ops = [lambda: g.wait_vm(s['vm'])]
        k = s['k']
        reads = []
        if k in 'q1':
            for f in range(3):
                for h in range(2):
                    if k == 'q':
                        reads.append((base + 4 * f + 2 * h, vTr96, off0 + 1536 * h + 32 * f))
                    else:
                        reads.append((base + 4 * f + 2 * h, vTr96b, off0 + 1536 * h + 8 * f))
        else:
            for f in range(4):
                for h in range(2):
                    reads.append((base + 4 * f + 2 * h, vTrA if f < 2 else vTrB, off0 + 2048 * h + 8 * (f & 1)))
        for n, (d, va, off) in enumerate(reads):
            def rd(d=d, va=va, off=off, last=(n == len(reads) - 1)):
                q = op('ds_read_b64_tr_b16 %s[%d:%d], v%d offset:%d' % (f_, d, d + 1, va, off))
                if last:
                    for x in range(s['unit'], s['unit'] + s['u']):
                        self.busy[x] = False
                        self.freeseq[x] = q
            ops.append(rd)
        return ops

    def consume(self, n=1):
        for _ in range(n):
            if self.nc >= self.ni:
                return
            for f in self.consume_ops():
                f()

    def consume_upto(self, idx):
        while self.nc < idx:
            if self.nc >= self.ni:
                self.issue(1)
            self.consume(1)

    def pump(self, limit):
        while self.nc < min(self.ni, limit):
            self.consume(1)
        while self.can_issue():
            self.issue(1)


IDX_2, IDX_END = 36, 47
S = Stream()


def interleave(main, side, per=1, start=0):
    side = list(side)
    for n, m in enumerate(main):
        op(m)
        if n >= start:
            for _ in range(per):
                if side:
                    side.pop(0)()
    for f in side:
        f()


def touch_w2(lo, hi):
    for n in range(lo, hi):
        if n == lo or n % 4 == 0:
            slot_off('2', n >> 2)
        op('s_mov_b32 m0, %d' % (FDUMP - (n & 3) * 1024))
        op('buffer_load_dwordx4 v%d, %s, s%d offen offset:%d lds' % (vD2[n & 3], srd(S_W2), sOff, (n & 3) * 1024))


poll_id = [0]


def post(val, store_seq):
    g.wait_vm(store_seq)
    op('s_barrier')
    n = poll_id[0]
    R = g.raw
    R('    s_cmp_lg_u32 s%d, 0' % sW)
    R('    s_cbranch_scc1 %s_%d' % ('PF' if cfg('PF', 1) else 'NOPOST', n))
    if n == 0:
        R('    s_mov_b32 s%d, 0x40000' % sSpin)
        R('INIT_%d:' % n)
        R('    v_readfirstlane_b32 s%d, v%d' % (sT0, vAnn))
        R('    s_nop 1')
        R('    s_cmp_eq_u32 s%d, 1' % sT0)
        R('    s_cbranch_scc1 INITOK_%d' % n)
        R('    buffer_load_dword v%d, off, %s, 0 sc1' % (vAnn, srd(S_DBG)))
        R('    s_waitcnt vmcnt(0)')
        R('    s_sub_u32 s%d, s%d, 1' % (sSpin, sSpin))
        R('    s_cmp_lg_u32 s%d, 0' % sSpin)
        R('    s_cbranch_scc1 INIT_%d' % n)
        R('INITOK_%d:' % n)
    R('    v_mov_b32 v%d, %d' % (vFlag, val))
    R('    s_mov_b64 exec, 1')
    R('    buffer_store_dword v%d, off, %s, s%d sc1' % (vFlag, srd(S_A), sFlagB))
    R('    s_mov_b64 exec, -1')
    if cfg('PF', 1):
        R('    s_branch NOPOST_%d' % n)
        R('PF_%d:' % n)
        R('    s_mov_b32 m0, %d' % FDUMP)
        if val < 3:
            R('    s_and_b32 s%d, s%d, 1' % (sT0, sW))
            R('    s_xor_b32 s%d, s%d, 1' % (sT0, sT0))
            R('    s_lshl_b32 s%d, s%d, 1' % (sT1, sJ))
            R('    s_add_u32 s%d, s%d, s%d' % (sT0, sT0, sT1))
            R('    s_lshl_b32 s%d, s%d, 10' % (sT0, sT0))
            R('    s_add_u32 s%d, s%d, s%d' % (sT0, sT0, sR))
            for t in range(4):
                R('    buffer_load_dwordx4 v%d, %s, s%d offen sc1 lds' % (vL16, srd(S_O if val == 1 else S_H), sT0))
                if t < 3:
                    R('    s_add_u32 s%d, s%d, 16384' % (sT0, sT0))
        else:
            R('    s_mul_i32 s%d, s%d, 3' % (sT0, sJ))
            R('    s_add_u32 s%d, s%d, s%d' % (sT0, sT0, sW))
            R('    s_lshl_b32 s%d, s%d, 11' % (sT0, sT0))
            R('    s_mul_i32 s%d, s%d, 3' % (sT1, sR))
            R('    s_add_u32 s%d, s%d, s%d' % (sT0, sT0, sT1))
            R('    s_sub_u32 s%d, s%d, 2048' % (sT0, sT0))
            for t in range(8):
                R('    buffer_load_dwordx4 v%d, %s, s%d offen sc1 lds' % (vL16, srd(S_A), sT0))
                if t < 7:
                    R('    s_add_u32 s%d, s%d, %d' % (sT0, sT0, 1024 if t % 2 == 0 else 49152 - 1024))
    R('NOPOST_%d:' % n)


def wait_flags(val):
    n = poll_id[0]
    poll_id[0] += 1
    R = g.raw
    R('    s_cmp_lg_u32 s%d, 0' % sW)
    R('    s_cbranch_scc1 DONE_%d' % n)
    R('    s_mov_b32 s%d, 0x40000' % sSpin)
    R('POLL_%d:' % n)
    R('    buffer_load_dword v%d, v%d, %s, s%d offen sc1' % (vPoll, vLane4, srd(S_A), sFlag))
    R('    s_waitcnt vmcnt(0)')
    R('    v_cmp_gt_u32 vcc, %d, v%d' % (val, vPoll))
    R('    s_nop 4')
    R('    s_cbranch_vccz DONE_%d' % n)
    R('    s_sub_u32 s%d, s%d, 1' % (sSpin, sSpin))
    R('    s_cmp_lg_u32 s%d, 0' % sSpin)
    R('    s_cbranch_scc1 POLL_%d' % n)
    R('DONE_%d:' % n)
    op('s_barrier')


g.raw('; @launch grid=(256,1,1) block=(256,1,1) lds=%d' % LDS_TOTAL)
g.raw('.amdgcn_target "amdgcn-amd-amdhsa--gfx950"')
g.raw('.text')
g.raw('.globl ' + NAME)
g.raw('.p2align 8')
g.raw('.type %s,@function' % NAME)
g.raw(NAME + ':')
if cfg('DS', 0):
    op('s_memrealtime s[96:97]')
op('s_cmp_ge_u32 s2, 256')
op('s_cbranch_scc1 END')
op('s_load_dwordx16 s[4:19], s[0:1], 0')
op('s_load_dwordx2 s[20:21], s[0:1], 64')
T0, T1, T2, T3, T4, T5 = 32, 33, 34, 35, 36, 37
vL = 38
op('v_and_b32 v%d, 63, v0' % vL)
op('v_lshrrev_b32 v%d, 6, v0' % T0)
op('v_and_b32 v%d, 15, v0' % vM)
op('v_bfe_u32 v%d, v0, 4, 2' % vG)
op('v_readfirstlane_b32 s%d, v%d' % (sW, T0))
op('v_lshlrev_b32 v%d, 4, v%d' % (vL16, vL))
op('s_and_b32 s%d, s2, 7' % sC)
op('s_lshr_b32 s%d, s2, 6' % sQ)
op('s_lshl_b32 s%d, s%d, 3' % (sT0, sQ))
op('s_add_u32 s%d, s%d, s%d' % (sC, sC, sT0))
op('s_bfe_u32 s%d, s2, 0x30003' % sJ)
if cfg('JX', 0):
    op('s_xor_b32 s%d, s%d, %d' % (sJ, sJ, cfg('JX', 0)))
op('s_lshl_b32 s%d, s%d, 16' % (sR, sC))
for q in range(1, 5):
    op('s_add_u32 s%d, s%d, %d' % (sXg[q], sR, (q - 1) * 16384))
op('s_lshl_b32 s%d, s%d, 2' % (sT0, sW))
op('v_add_u32 v%d, s%d, v%d' % (T0, sT0, vG))
op('v_lshlrev_b32 v%d, 10, v%d' % (T1, T0))
op('v_lshl_add_u32 v%d, v%d, 4, v%d' % (vXo, vM, T1))
vX0 = 39
op('s_sub_u32 s%d, s%d, 16384' % (sT1, sR))
op('v_add_u32 v%d, s%d, v%d' % (vX0, sT1, vXo))
g.raw('    s_waitcnt lgkmcnt(0)')


def mk_srd(b, plo, size, add=0):
    if add:
        op('s_add_u32 s%d, s%d, %d' % (b, plo, add))
        op('s_addc_u32 s%d, s%d, 0' % (b + 1, plo + 1))
        op('s_and_b32 s%d, s%d, 0xffff' % (b + 1, b + 1))
    else:
        op('s_mov_b32 s%d, s%d' % (b, plo))
        op('s_and_b32 s%d, s%d, 0xffff' % (b + 1, plo + 1))
    op('s_mov_b32 s%d, %d' % (b + 2, size))
    op('s_mov_b32 s%d, 0x00020000' % (b + 3))


mk_srd(S_X, 4, 2097152)
mk_srd(S_A, 20, 6291456 + 32768 + 131072, add=4194304)
mk_srd(S_DBG, 18, 256)
g.raw('    v_mov_b32 v%d, 0' % T2)
g.raw('    v_mul_u32_u24 v%d, %d, v0' % (T3, FSTR))
g.raw('    s_mov_b32 s%d, 6291456' % sT0)
g.raw('    s_cmp_lg_u32 s2, 0')
g.raw('    s_cbranch_scc1 NOINIT')
g.raw('    buffer_store_dword v%d, v%d, %s, s%d offen sc1' % (T2, T3, srd(S_A), sT0))
g.raw('NOINIT:')
RAW = 160
for gq in range(5):
    for q in range(4):
        d = RAW + 16 * gq + 4 * q
        if gq == 0:
            op('buffer_load_dwordx4 %s, v%d, %s, 0 offen offset:%d' % (vr(d, 4), vX0, srd(S_X), q * 256))
        else:
            op('buffer_load_dwordx4 %s, v%d, %s, s%d offen offset:%d' % (vr(d, 4), vXo, srd(S_X), sXg[gq], q * 256))
mk_srd(S_WQ, 6, 1572864)
mk_srd(S_WO, 8, 524288)
mk_srd(S_W1, 12, 1409024)
mk_srd(S_W2, 14, 1409024)
op('s_mul_i32 s%d, s%d, %d' % (sRing, sW, RSTRIDE))
op('s_add_u32 s%d, s%d, %d' % (sRing, sRing, RING0))
op('s_mul_i32 s%d, s%d, 3' % (sT0, sW))
op('s_lshl_b32 s%d, s%d, 7' % (sT1, sJ))
op('s_mul_i32 s%d, s%d, 384' % (sT2, sJ))
op('s_mul_i32 s%d, s%d, 96' % (sOff, sW))
op('s_add_u32 s%d, s%d, s%d' % (sT2, sT2, sOff))
for i in range(3):
    op('v_add_u32 v%d, %d, v%d' % (T0, 64 * i, vL))
    op('v_mul_u32_u24 v%d, 171, v%d' % (T1, T0))
    op('v_lshrrev_b32 v%d, 10, v%d' % (T1, T1))
    op('v_mul_u32_u24 v%d, 6, v%d' % (T2, T1))
    op('v_sub_u32 v%d, v%d, v%d' % (T2, T0, T2))
    op('v_bfe_u32 v%d, v%d, 2, 2' % (T3, T1))
    op('v_and_b32 v%d, 3, v%d' % (T4, T1))
    op('v_lshl_add_u32 v%d, v%d, 3, v%d' % (T3, T3, T4))
    op('v_lshrrev_b32 v%d, 4, v%d' % (T4, T1))
    op('v_lshl_add_u32 v%d, v%d, 2, v%d' % (T3, T4, T3))
    op('v_lshrrev_b32 v%d, 1, v%d' % (T4, T2))
    op('v_add_u32 v%d, s%d, v%d' % (T4, sT0, T4))
    op('v_lshrrev_b32 v%d, 2, v%d' % (T5, T4))
    op('v_lshlrev_b32 v%d, 10, v%d' % (T5, T5))
    op('v_and_b32 v%d, 3, v%d' % (T4, T4))
    op('v_lshl_add_u32 v%d, v%d, 5, v%d' % (T5, T4, T5))
    op('v_and_b32 v%d, 1, v%d' % (T4, T2))
    op('v_lshl_add_u32 v%d, v%d, 4, v%d' % (T5, T4, T5))
    op('v_add_u32 v%d, s%d, v%d' % (T5, sT1, T5))
    op('v_mul_u32_u24 v%d, 3072, v%d' % (T4, T3))
    op('v_add_u32 v%d, v%d, v%d' % (T5, T5, T4))
    op('v_subrev_u32 v%d, %d, v%d' % (vDq[i], 1024 * i, T5))
    op('v_mul_u32_u24 v%d, 2752, v%d' % (T4, T3))
    op('v_lshl_add_u32 v%d, v%d, 4, v%d' % (T4, T2, T4))
    op('v_add_u32 v%d, s%d, v%d' % (T4, sT2, T4))
    op('v_subrev_u32 v%d, %d, v%d' % (vD1[i], 1024 * i, T4))
WB = 92
XB = 116
S.issue(6)
mk_srd(S_OUT, 16, 2097152)
mk_srd(S_O, 20, 2097152)
mk_srd(S_H, 20, 2097152, add=2097152)
if STAMPS and not cfg('DS', 0):
    mk_srd(S_TS, 20, 65536, add=33554432)
stamp('start')
for t in range(4):
    op('s_add_u32 s%d, s%d, %d' % (sT0, sW, t))
    op('s_and_b32 s%d, s%d, 3' % (sT0, sT0))
    op('s_lshl_b32 s%d, s%d, 14' % (sT0, sT0))
    op('s_add_u32 s%d, s%d, s%d' % (sT[t], sR, sT0))
    op('s_mul_i32 s%d, s%d, 3' % (sTA[t], sT[t]))
op('s_mul_i32 s%d, s%d, %d' % (sFlag, sC, 8 * FSTR))
op('s_add_u32 s%d, s%d, 6291456' % (sFlag, sFlag))
op('s_mul_i32 s%d, s%d, %d' % (sT0, sJ, FSTR))
op('s_add_u32 s%d, s%d, s%d' % (sFlagB, sFlag, sT0))
op('s_mov_b32 s%d, 0x3f803f80' % sOnes)
op('s_mov_b32 s%d, 0x05040100' % sPLo)
op('s_mov_b32 s%d, 0x07060302' % sPHi)
op('s_lshl_b32 s%d, s%d, 17' % (sWoB, sW))
op('s_mul_i32 s%d, s%d, %d' % (sW2B, sW, 11 * 32768))
op('s_mul_i32 s%d, s%d, %d' % (sT0, sQ, 3 * 32768))
op('s_add_u32 s%d, s%d, s%d' % (sW2B, sW2B, sT0))
op('s_mov_b32 s%d, 98304' % sC98)
op('s_lshl_b32 s%d, s%d, 2' % (sT0, sW))
op('v_add_u32 v%d, s%d, v%d' % (T0, sT0, vG))
op('v_xor_b32 v%d, v%d, v%d' % (T1, vM, T0))
op('v_lshlrev_b32 v%d, 4, v%d' % (T1, T1))
op('v_lshl_add_u32 v%d, v%d, 10, v%d' % (vXTw, T0, T1))
vXTw4 = 40
op('v_add_u32 v%d, 0x10000, v%d' % (vXTw4, vXTw))
op('v_lshlrev_b32 v%d, 3, v%d' % (vStW, T0))
op('v_add_u32 v%d, %d, v%d' % (vStW, ST, vStW))
op('v_lshlrev_b32 v%d, 3, v%d' % (vStR, vM))
op('v_add_u32 v%d, %d, v%d' % (vStR, ST, vStR))
op('v_xor_b32 v%d, v%d, v%d' % (T1, vM, vG))
for b in range(4):
    op('s_add_u32 s%d, s%d, %d' % (sT0, sQ, b))
    op('s_and_b32 s%d, s%d, 3' % (sT0, sT0))
    op('s_lshl_b32 s%d, s%d, 2' % (sT0, sT0))
    op('v_xor_b32 v%d, s%d, v%d' % (T2, sT0, T1))
    op('v_lshlrev_b32 v%d, 4, v%d' % (T2, T2))
    op('v_lshl_add_u32 v%d, v%d, 10, v%d' % (vXr[b], vM, T2))
    op('v_add_u32 v%d, 0x10000, v%d' % (vXr4[b], vXr[b]))
op('v_lshrrev_b32 v%d, 2, v%d' % (T0, vL))
op('v_and_b32 v%d, 3, v%d' % (T1, vL))
op('v_mul_u32_u24 v%d, 96, v%d' % (T2, T0))
op('v_add_u32 v%d, s%d, v%d' % (T2, sRing, T2))
op('v_lshl_add_u32 v%d, v%d, 3, v%d' % (vTr96, T1, T2))
op('v_mul_u32_u24 v%d, 24, v%d' % (T3, T1))
op('v_add_u32 v%d, v%d, v%d' % (vTr96b, T3, T2))
op('v_bfe_u32 v%d, v%d, 3, 1' % (T3, vL))
op('v_lshl_add_u32 v%d, v%d, 2, v%d' % (T3, T3, T1))
op('v_lshlrev_b32 v%d, 4, v%d' % (T3, T3))
op('v_lshl_add_u32 v%d, v%d, 7, v%d' % (T3, T0, T3))
op('v_xor_b32 v%d, 64, v%d' % (T4, T3))
op('v_add_u32 v%d, s%d, v%d' % (vTrA, sRing, T3))
op('v_add_u32 v%d, s%d, v%d' % (vTrB, sRing, T4))
op('v_lshrrev_b32 v%d, 5, v%d' % (T0, vL))
op('v_bfe_u32 v%d, v%d, 3, 2' % (T1, vL))
op('v_lshl_add_u32 v%d, v%d, 3, v%d' % (T0, T0, T1))
op('v_and_b32 v%d, 7, v%d' % (T1, vL))
op('v_bfe_u32 v%d, v%d, 4, 1' % (T2, vL))
op('v_lshlrev_b32 v%d, 2, v%d' % (T2, T2))
op('v_xor_b32 v%d, v%d, v%d' % (T1, T1, T2))
op('v_lshlrev_b32 v%d, 4, v%d' % (T1, T1))
op('v_lshl_add_u32 v%d, v%d, 10, v%d' % (T0, T0, T1))
op('s_lshl_b32 s%d, s%d, 7' % (sT1, sJ))
op('v_add_u32 v%d, s%d, v%d' % (T0, sT1, T0))
for i in range(4):
    op('v_add_u32 v%d, %d, v%d' % (vD2[i], (16 * (i & 1) + 4 * (i >> 1) - i) * 1024, T0))
op('s_lshl_b32 s%d, s%d, 8' % (sT0, sW))
op('v_lshlrev_b32 v%d, 4, v%d' % (T0, vG))
op('v_lshl_add_u32 v%d, v%d, 10, v%d' % (T0, vM, T0))
op('s_add_u32 s%d, s%d, s%d' % (sT0, sT1, sT[0]))
op('v_add_u32 v%d, s%d, v%d' % (vHs, sT0, T0))


def stage(raw, ngroups, ones_row):
    for x in range(2 * ngroups):
        op('v_mov_b32 v%d, 0' % (SA + x))
    for gq in range(ngroups):
        for q in range(4):
            d = raw + 16 * gq + 4 * q
            if ones_row and gq == 0:
                op('s_cmp_eq_u32 s%d, 0' % sW)
                op('s_cselect_b32 s%d, 0xffff, 0' % sT0)
                g.wait_vm(g.pend[('v', d)][1])
                op('s_mov_b32 exec_lo, s%d' % sT0)
                op('s_mov_b32 exec_hi, 0')
                for x in range(4):
                    op('v_mov_b32 v%d, s%d' % (d + x, sOnes))
                op('s_mov_b64 exec, -1')
            if gq < 4:
                op('ds_write_b128 v%d, %s offset:%d' % (vXTw, vr(d, 4), gq * 16384 + q * 256))
            else:
                op('ds_write_b128 v%d, %s offset:%d' % (vXTw4, vr(d, 4), q * 256))
            for x in range(4):
                op('v_dot2c_f32_bf16 v%d, s%d, v%d' % (SA + 2 * gq, sOnes, d + x))
                op('v_dot2c_f32_bf16 v%d, v%d, v%d' % (SA + 2 * gq + 1, d + x, d + x))


def stats_final_ops(ngroups, tmp):
    L = []
    A = lambda s: L.append(lambda: op(s))
    for ror in (8, 4, 2, 1):
        for x in range(2 * ngroups):
            A('v_add_f32_dpp v%d, v%d, v%d row_ror:%d row_mask:0xf bank_mask:0xf' % (SA + x, SA + x, SA + x, ror))
    for gq in range(ngroups):
        s, q = SA + 2 * gq, SA + 2 * gq + 1
        A('v_mul_f32 v%d, 0xbb000000, v%d' % (s, s))
        A('v_mul_f32 v%d, 0x3b000000, v%d' % (q, q))
    for gq in range(ngroups):
        s, q = SA + 2 * gq, SA + 2 * gq + 1
        A('v_fma_f32 v%d, -v%d, v%d, v%d' % (q, s, s, q))
        A('v_max_f32 v%d, 0, v%d' % (q, q))
        A('v_add_f32 v%d, 0x3727c5ac, v%d' % (q, q))
    for gq in range(ngroups):
        A('v_rsq_f32 v%d, v%d' % (SA + 2 * gq + 1, SA + 2 * gq + 1))
    for gq in range(ngroups):
        A('ds_write_b64 v%d, %s offset:%d' % (vStW, vr(SA + 2 * gq, 2), gq * 128))
    return L


def xread_ops(ks, buf, ntiles):
    L = []
    a, b = ks & 3, ks >> 2
    for t in range(ntiles):
        d = buf + 4 * t
        if t < 4:
            s = 'ds_read_b128 %s, v%d offset:%d' % (vr(d, 4), vXr[b], t * 16384 + a * 256)
        else:
            s = 'ds_read_b128 %s, v%d offset:%d' % (vr(d, 4), vXr4[b], a * 256)
        L.append(lambda s=s: op(s))
    return L


stage(RAW, 5, True)
g.wait_all_lg()
op('s_barrier')
g.raw('    s_cmp_lg_u32 s2, 0')
g.raw('    s_cbranch_scc1 NOANN')
g.raw('    s_cmp_lg_u32 s%d, 0' % sW)
g.raw('    s_cbranch_scc1 NOANN')
g.raw('    v_mov_b32 v%d, 1' % T2)
g.raw('    s_mov_b64 exec, 1')
g.raw('    buffer_store_dword v%d, off, %s, 0 sc1' % (T2, srd(S_DBG)))
g.raw('    s_mov_b64 exec, -1')
g.raw('NOANN:')
stamp('x staged')
ACC = 32
for f in xread_ops(0, XB, 5):
    f()
S.consume(1)
S.limit = 21
fin = stats_final_ops(5, None)
for ks in range(16):
    wb = WB + 12 * (ks & 1)
    xb = XB + 20 * (ks & 1)
    main = []
    for t in range(5):
        for f in range(3):
            d = ACC + 12 * t + 4 * f
            c = '0' if ks == 0 else vr(d, 4)
            main.append('v_mfma_f32_16x16x32_bf16 %s, %s, %s, %s' % (vr(d, 4), vr(wb + 4 * f, 4), vr(xb + 4 * t, 4), c))
    g.wait_all_lg()
    if ks == 15:
        op('s_barrier')
    op(main[0])
    side = []
    if ks < 15:
        side += xread_ops(ks + 1, XB + 20 * ((ks + 1) & 1), 5)
        side += S.consume_ops()
    if S.can_issue():
        side += S.issue_ops()
    n = 12 if ks >= 1 else 0
    side += fin[:n]
    fin = fin[n:]
    interleave(main[1:], side, per=2)
assert not fin
stamp('p1 gemm')
op('buffer_load_dword v%d, off, %s, 0 sc1' % (vAnn, srd(S_DBG)))
op('v_bfe_u32 v%d, v%d, 4, 3' % (vLane4, vL16))
op('v_mul_u32_u24 v%d, %d, v%d' % (vLane4, FSTR, vLane4))
op('buffer_load_dwordx4 %s, v%d, %s, 0 offen' % (vr(HT, 4), vHs, srd(S_X)))
op('buffer_load_dwordx4 %s, v%d, %s, 0 offen offset:64' % (vr(HT + 4, 4), vHs, srd(S_X)))
while S.can_issue():
    S.issue(1)
CS = 92
STP = 104
for t in range(5):
    op('ds_read_b64 %s, v%d offset:%d' % (vr(STP + 2 * t, 2), vStR, t * 128))
for x in range(12):
    op('v_mov_b32_dpp v%d, v%d row_newbcast:0 row_mask:0xf bank_mask:0xf' % (CS + x, ACC + x))
vQw = 116
op('s_mul_i32 s%d, s%d, 11520' % (sT0, sW))
op('v_mul_u32_u24 v%d, 48, v%d' % (vQw, vM))
op('v_lshl_add_u32 v%d, v%d, 3, v%d' % (vQw, vG, vQw))
op('v_add_u32 v%d, s%d, v%d' % (vQw, sT0, vQw))
PK = 120
for t in range(5):
    st = vr(STP + 2 * t, 2)
    for f in range(3):
        d = ACC + 12 * t + 4 * f
        for hh in range(2):
            op('v_pk_fma_f32 %s, %s, %s, %s op_sel:[0,0,0] op_sel_hi:[1,0,1]' % (
                vr(d + 2 * hh, 2), vr(CS + 4 * f + 2 * hh, 2), st, vr(d + 2 * hh, 2)))
    for f in range(3):
        d = ACC + 12 * t + 4 * f
        for hh in range(2):
            op('v_pk_mul_f32 %s, %s, %s op_sel:[0,1] op_sel_hi:[1,1]' % (vr(d + 2 * hh, 2), vr(d + 2 * hh, 2), st))
    for f in range(3):
        d = ACC + 12 * t + 4 * f
        p = PK + 6 * (t & 1) + 2 * f
        op('v_cvt_pk_bf16_f32 v%d, v%d, v%d' % (p, d, d + 1))
        op('v_cvt_pk_bf16_f32 v%d, v%d, v%d' % (p + 1, d + 2, d + 3))
        op('ds_write_b64 v%d, %s offset:%d' % (vQw, vr(p, 2), f * 3840 + t * 768))
g.wait_all_lg()
op('s_barrier')
stamp('qkv')
AQ, AK, AV, AS_, AO, AT, AP, AOP = 32, 40, 104, 168, 176, 192, 208, 212
vK = 220
vRow = 221
vOs = 222
op('v_lshrrev_b32 v%d, 4, v%d' % (vRow, vL16))
op('s_mul_i32 s%d, s%d, 3840' % (sT0, sW))
op('v_mul_u32_u24 v%d, 48, v%d' % (vK, vRow))
op('v_add_u32 v%d, s%d, v%d' % (vK, sT0, vK))
for hh in range(2):
    op('ds_read_b128 %s, v%d offset:%d' % (vr(AQ + 4 * hh, 4), vK, 96 + 672 + 16 * hh))
for i in range(8):
    for hh in range(2):
        op('ds_read_b128 %s, v%d offset:%d' % (vr(AK + 8 * i + 4 * hh, 4), vK, 96 + 15360 + (14 - 2 * i) * 48 + 16 * hh))
for i in range(8):
    op('v_mov_b32 v%d, 0' % (AS_ + i))
for x in range(16):
    op('v_mov_b32 v%d, 0' % (AO + x))
op('s_lshl_b32 s%d, s%d, 11' % (sT0, sJ))
op('s_lshl_b32 s%d, s%d, 9' % (sT1, sW))
op('s_add_u32 s%d, s%d, s%d' % (sT0, sT0, sT1))
op('s_add_u32 s%d, s%d, s%d' % (sT0, sT0, sR))
op('v_lshlrev_b32 v%d, 14, v%d' % (vOs, vG))
op('v_lshl_add_u32 v%d, v%d, 4, v%d' % (vOs, vM, vOs))
op('v_add_u32 v%d, s%d, v%d' % (vOs, sT0, vOs))
for i in range(8):
    for d in range(8):
        op('v_dot2c_f32_bf16 v%d, v%d, v%d' % (AS_ + i, AQ + d, AK + 8 * i + d))
    for hh in range(2):
        op('ds_read_b128 %s, v%d offset:%d' % (vr(AV + 8 * i + 4 * hh, 4), vK, 96 + 30720 + (14 - 2 * i) * 48 + 16 * hh))
op('s_cmp_lg_u32 s%d, 0' % sC)
op('s_nop 3')
op('s_cbranch_scc1 NOMASK')
op('v_mov_b32 v%d, 0xff800000' % AT)
for i in range(1, 8):
    op('v_cmp_gt_u32 vcc, %d, v%d' % (2 * i, vRow))
    op('v_cndmask_b32 v%d, v%d, v%d, vcc' % (AS_ + i, AS_ + i, AT))
g.label('NOMASK')
CEXP = 0x3eb8aa3b
op('v_max3_f32 v%d, v%d, v%d, v%d' % (AT, AS_, AS_ + 1, AS_ + 2))
op('v_max3_f32 v%d, v%d, v%d, v%d' % (AT + 1, AS_ + 3, AS_ + 4, AS_ + 5))
op('v_max3_f32 v%d, v%d, v%d, v%d' % (AT, AT, AS_ + 6, AS_ + 7))
op('v_max_f32 v%d, v%d, v%d' % (AT, AT, AT + 1))
op('s_mov_b32 s%d, 0x%x' % (sT0, CEXP))
op('v_mul_f32 v%d, s%d, v%d' % (AT, sT0, AT))
for i in range(8):
    op('v_fma_f32 v%d, v%d, s%d, -v%d' % (AS_ + i, AS_ + i, sT0, AT))
for i in range(8):
    op('v_exp_f32 v%d, v%d' % (AS_ + i, AS_ + i))
op('v_pk_add_f32 %s, %s, %s' % (vr(AT, 2), vr(AS_, 2), vr(AS_ + 2, 2)))
op('v_pk_add_f32 %s, %s, %s' % (vr(AT + 2, 2), vr(AS_ + 4, 2), vr(AS_ + 6, 2)))
op('v_pk_add_f32 %s, %s, %s' % (vr(AT, 2), vr(AT, 2), vr(AT + 2, 2)))
op('v_add_f32 v%d, v%d, v%d' % (AT, AT, AT + 1))
op('v_rcp_f32 v%d, v%d' % (AT, AT))
for i in range(4):
    op('v_pk_mul_f32 %s, %s, %s op_sel:[0,0] op_sel_hi:[1,0]' % (vr(AS_ + 2 * i, 2), vr(AS_ + 2 * i, 2), vr(AT, 2)))
for i in range(4):
    op('v_cvt_pk_bf16_f32 v%d, v%d, v%d' % (AP + i, AS_ + 2 * i, AS_ + 2 * i + 1))
for i in range(4):
    va, vb = AV + 16 * i, AV + 16 * i + 8
    for half in range(2):
        for d in range(4 * half, 4 * half + 4):
            op('v_perm_b32 v%d, v%d, v%d, s%d' % (AT + 2 * (d & 3), vb + d, va + d, sPLo))
            op('v_perm_b32 v%d, v%d, v%d, s%d' % (AT + 2 * (d & 3) + 1, vb + d, va + d, sPHi))
        for d in range(4 * half, 4 * half + 4):
            op('v_dot2c_f32_bf16 v%d, v%d, v%d' % (AO + 2 * d, AP + i, AT + 2 * (d & 3)))
            op('v_dot2c_f32_bf16 v%d, v%d, v%d' % (AO + 2 * d + 1, AP + i, AT + 2 * (d & 3) + 1))
for d in range(8):
    op('v_cvt_pk_bf16_f32 v%d, v%d, v%d' % (AOP + d, AO + 2 * d, AO + 2 * d + 1))
op('buffer_store_dwordx4 %s, v%d, %s, 0 offen sc1' % (vr(AOP, 4), vOs, srd(S_O)))
q = op('buffer_store_dwordx4 %s, v%d, %s, 0 offen offset:256 sc1' % (vr(AOP + 4, 4), vOs, srd(S_O)))
stamp('attn')
op('s_mul_i32 s%d, s%d, 11264' % (sT0, sW))
op('v_add_u32 v%d, s%d, v%d' % (vAf, sT0, vL16))
op('s_mul_i32 s%d, s%d, 3072' % (sT1, sQ))
for t in range(4):
    op('s_add_u32 s%d, s%d, s%d' % (sTA[t], sTA[t], sT1))
for b in range(4):
    op('s_add_u32 s%d, s%d, %d' % (sT0, sQ, b))
    op('s_and_b32 s%d, s%d, 3' % (sT0, sT0))
    op('s_lshl_b32 s%d, s%d, 10' % (sT0, sT0))
    op('v_add_u32 v%d, s%d, v%d' % (vXr[b], sT0, vL16))
op('v_and_b32 v%d, 1, v%d' % (T0, vG))
op('v_mul_u32_u24 v%d, 49152, v%d' % (T0, T0))
op('v_lshrrev_b32 v%d, 1, v%d' % (T1, vG))
op('v_mul_u32_u24 v%d, 768, v%d' % (T1, T1))
op('v_add_u32 v%d, v%d, v%d' % (T0, T0, T1))
op('v_lshl_add_u32 v%d, v%d, 4, v%d' % (T0, vM, T0))
op('s_mul_i32 s%d, s%d, 3' % (sT0, sR))
op('s_lshl_b32 s%d, s%d, 4' % (sT1, sT2))
op('s_add_u32 s%d, s%d, s%d' % (sT0, sT0, sT1))
op('v_add_u32 v%d, s%d, v%d' % (vAs, sT0, T0))
for q_ in range(4):
    op('s_add_u32 s%d, s%d, %d' % (sXg[q_ + 1], sT[0], 4096 * q_))
op('v_lshrrev_b32 v%d, 1, v%d' % (vStW, vL16))
op('v_add_u32 v%d, %d, v%d' % (vStW, ST, vStW))
S.limit = IDX_2
S.pump(IDX_2)
touch_w2(0, cfg('TW', 6))
post(1, q)
S.pump(IDX_2)


def ksplit_phase(nks, bfrag, afrag, loads, rdbuf, final, pump_after_loads, pump_after_mfma, upfront):
    ACC = 32
    for f in loads[:upfront]:
        f()
    loads = loads[upfront:]
    stamp('ld%d' % nks)
    pump_after_loads()
    stamp('pl%d' % nks)
    order = (1, 2, 3, 0)
    RW = 96
    for n, tau in enumerate((1, 2, 3)):
        op('s_add_u32 s%d, s%d, %d' % (sT0, sW, tau))
        op('s_and_b32 s%d, s%d, 3' % (sT0, sT0))
        op('s_mul_i32 s%d, s%d, 12288' % (sT0, sT0))
        op('v_add_u32 v%d, s%d, v%d' % (RW + n, sT0, vL16))
    op('s_mul_i32 s%d, s%d, 12288' % (sT0, sW))
    op('v_add_u32 v%d, s%d, v%d' % (RW + 3, sT0, vL16))
    for x in range(8):
        op('v_lshlrev_b32 v%d, 16, v%d' % (ACC + 2 * x, HT + x))
        op('v_and_b32 v%d, 0xffff0000, v%d' % (ACC + 2 * x + 1, HT + x))
    pendw = []
    for tau in order:
        main = []
        for ks in range(nks):
            for f in range(4):
                d = ACC + 16 * tau + 4 * f
                c = '0' if ks == 0 and tau != 0 else vr(d, 4)
                main.append('v_mfma_f32_16x16x32_bf16 %s, %s, %s, %s' % (vr(d, 4), afrag(ks, f), bfrag(tau, ks), c))
        for n, m in enumerate(main):
            op(m)
            if n >= 4 and pendw:
                pendw.pop(0)()
            if n % 4 == 3 and loads:
                loads.pop(0)()
        stamp('t%d_%d' % (nks, tau))
        pendw = []
        if tau != 0:
            for f in range(4):
                s = 'ds_write_b128 v%d, %s offset:%d' % (RW + tau - 1, vr(ACC + 16 * tau + 4 * f, 4), (tau - 1) * 4096 + f * 1024)
                pendw.append(lambda s=s: op(s))
    g.wait_all_lg()
    op('s_barrier')
    stamp('rb%d' % nks)
    for sl in range(3):
        for f in range(4):
            op('ds_read_b128 %s, v%d offset:%d' % (vr(rdbuf + 16 * sl + 4 * f, 4), RW + 3, sl * 4096 + f * 1024))
    pump_after_mfma()
    for sl in range(3):
        for x in range(8):
            op('v_pk_add_f32 %s, %s, %s' % (vr(ACC + 2 * x, 2), vr(ACC + 2 * x, 2), vr(rdbuf + 16 * sl + 2 * x, 2)))
    for x in range(8):
        op('v_cvt_pk_bf16_f32 v%d, v%d, v%d' % (HT + x, ACC + 2 * x, ACC + 2 * x + 1))
    return final()


wait_flags(1)
stamp('flag1')
OF = 124
loads = []
for tau in (1, 2, 3, 0):
    for ks in range(4):
        def ld(tau=tau, ks=ks):
            if ks == 0:
                op('s_lshl_b32 s%d, s%d, 12' % (sT1, sW))
                op('s_add_u32 s%d, s%d, s%d' % (sT1, sT1, sT[tau]))
            op('buffer_load_dwordx4 %s, v%d, %s, s%d offen sc1' % (vr(OF + 16 * tau + 4 * ks, 4), vXr[ks], srd(S_O), sT1))
        loads.append(ld)


def p2_final():
    op('s_lshl_b32 s%d, s%d, 11' % (sT0, sJ))
    op('s_add_u32 s%d, s%d, s%d' % (sT0, sT0, sT[0]))
    op('buffer_store_dwordx4 %s, v%d, %s, s%d offen sc1' % (vr(HT, 4), vL16, srd(S_H), sT0))
    op('buffer_store_dwordx4 %s, v%d, %s, s%d offen offset:1024 sc1' % (vr(HT + 4, 4), vL16, srd(S_H), sT0))
    for x in range(8):
        op('v_dot2c_f32_bf16 v%d, s%d, v%d' % (SA + 2 * (x & 1), sOnes, HT + x))
        op('v_dot2c_f32_bf16 v%d, v%d, v%d' % (SA + 2 * (x & 1) + 1, HT + x, HT + x))
    op('s_lshl_b32 s%d, s%d, 12' % (sT0, sC))
    op('s_lshl_b32 s%d, s%d, 9' % (sT1, sJ))
    op('s_add_u32 s%d, s%d, s%d' % (sT0, sT0, sT1))
    op('s_lshl_b32 s%d, s%d, 7' % (sT1, sW))
    op('s_add_u32 s%d, s%d, s%d' % (sT0, sT0, sT1))
    op('s_add_u32 s%d, s%d, %d' % (sT0, sT0, STAT0 - ST))
    op('v_pk_add_f32 %s, %s, %s' % (vr(SA, 2), vr(SA, 2), vr(SA + 2, 2)))
    op('v_permlane32_swap_b32 v%d, v%d' % (SA, SA + 1))
    op('v_add_f32 v%d, v%d, v%d' % (SA, SA, SA + 1))
    op('v_mov_b32 v%d, v%d' % (SA + 1, SA))
    op('v_permlane16_swap_b32 v%d, v%d' % (SA, SA + 1))
    op('v_add_f32 v%d, v%d, v%d' % (SA, SA, SA + 1))
    op('v_mov_b32 v%d, v%d' % (SA + 1, SA))
    op('v_permlane32_swap_b32 v%d, v%d' % (SA, SA + 1))
    op('s_mov_b64 exec, 0xffff')
    q = op('buffer_store_dwordx2 %s, v%d, %s, s%d offen sc1' % (vr(SA, 2), vStR, srd(S_A), sT0))
    op('s_mov_b64 exec, -1')
    return q


STAT0 = 6291456 + 32768


def p2_after_loads():
    touch_w2(cfg('TW', 6), 12)
    for x in range(4):
        op('v_mov_b32 v%d, 0' % (SA + x))


S.consume_upto(S.index('o', 3) + 1)
q = ksplit_phase(4, lambda tau, ks: vr(OF + 16 * tau + 4 * ks, 4), lambda ks, f: ar(16 * ks + 4 * f, 4), loads, 188,
                 p2_final, p2_after_loads, lambda: None, 16)
stamp('p2')
S.limit = IDX_END
S.pump(IDX_END)
post(2, q)
S.pump(IDX_END)
S.consume_upto(IDX_2)
CS3 = 112
ONE = 96
for x in range(4):
    op('v_mov_b32 v%d, s%d' % (ONE + x, sOnes))
for ks in range(16):
    for f in range(3):
        c = '0' if ks == 0 else vr(CS3 + 4 * f, 4)
        op('v_mfma_f32_16x16x32_bf16 %s, %s, %s, %s' % (vr(CS3 + 4 * f, 4), ar(64 + 12 * ks + 4 * f, 4), vr(ONE, 4), c))

wait_flags(2)
stamp('flag2')
hd = []
op('s_lshl_b32 s%d, s%d, 14' % (sT1, sW))
for b in range(4):
    op('s_add_u32 s%d, s%d, %d' % (sT0, sQ, b))
    op('s_and_b32 s%d, s%d, 3' % (sT0, sT0))
    op('s_lshl_b32 s%d, s%d, 10' % (sT0, sT0))
    op('s_add_u32 s%d, s%d, s%d' % (sT0, sT0, sT1))
    for a in range(4):
        op('s_add_u32 m0, s%d, %d' % (sT0, 4096 * a))
        hd.append(op('buffer_load_dwordx4 v%d, %s, s%d offen sc1 lds' % (vXr[b], srd(S_H), sXg[a + 1])))
SP = 220
assert S.ni <= IDX_2 + 10
op('s_lshl_b32 s%d, s%d, 12' % (sT0, sC))
op('s_add_u32 s%d, s%d, %d' % (sT0, sT0, STAT0 - ST))
for jj in range(8):
    op('buffer_load_dwordx2 %s, v%d, %s, s%d offen offset:%d sc1' % (vr(SP + 2 * jj, 2), vStW, srd(S_A), sT0, 512 * jj))
g.wait_vm(hd[1])
op('s_barrier')
stamp('h staged')
HB = 80


def hread_ops(ks, buf):
    L = []
    for t in range(4):
        s_ = 'ds_read_b128 %s, v%d offset:%d' % (vr(buf + 4 * t, 4), vXr[ks >> 2], t * 16384 + (ks & 3) * 4096)
        L.append(lambda s_=s_: op(s_))
    return L


for f in hread_ops(0, HB):
    f()
fin = []
FA = lambda s_: fin.append(lambda: op(s_))
for x in range(4):
    FA('v_pk_add_f32 %s, %s, %s' % (vr(SP + 4 * x, 2), vr(SP + 4 * x, 2), vr(SP + 4 * x + 2, 2)))
for x in range(2):
    FA('v_pk_add_f32 %s, %s, %s' % (vr(SP + 8 * x, 2), vr(SP + 8 * x, 2), vr(SP + 8 * x + 4, 2)))
FA('v_pk_add_f32 %s, %s, %s' % (vr(SA, 2), vr(SP, 2), vr(SP + 8, 2)))
FA('v_mul_f32 v%d, 0xbb000000, v%d' % (SA, SA))
FA('v_mul_f32 v%d, 0x3b000000, v%d' % (SA + 1, SA + 1))
FA('v_fma_f32 v%d, -v%d, v%d, v%d' % (SA + 1, SA, SA, SA + 1))
FA('v_max_f32 v%d, 0, v%d' % (SA + 1, SA + 1))
FA('v_add_f32 v%d, 0x3727c5ac, v%d' % (SA + 1, SA + 1))
FA('v_rsq_f32 v%d, v%d' % (SA + 1, SA + 1))
FA('ds_write_b64 v%d, %s' % (vStW, vr(SA, 2)))
for ks in range(16):
    hb = HB + 16 * (ks & 1)
    main = []
    for t in range(4):
        for f in range(3):
            d = ACC + 12 * t + 4 * f
            c = '0' if ks == 0 else vr(d, 4)
            main.append('v_mfma_f32_16x16x32_bf16 %s, %s, %s, %s' % (vr(d, 4), ar(64 + 12 * ks + 4 * f, 4), vr(hb + 4 * t, 4), c))
    g.wait_all_lg()
    op(main[0])
    if ks in (1, 5):
        g.wait_vm(hd[5 if ks == 1 else 15])
        op('s_barrier')
    side = []
    if ks < 15:
        side += hread_ops(ks + 1, HB + 16 * ((ks + 1) & 1))
    n = 6 if ks >= 7 else 0
    side += fin[:n]
    fin = fin[n:]
    if ks == 12:
        for t in range(4):
            s = 'ds_read_b64 %s, v%d offset:%d' % (vr(SA + 2 * t, 2), vStR, t * 128)
            side.append(lambda s=s: op(s))
    if ks == cfg('R5', 10):
        while S.nc < S.ni:
            side += S.consume_ops()
    interleave(main[1:], side, per=(4 if ks == cfg('R5', 10) else 1))
    if ks == cfg('R5', 10):
        while S.can_issue():
            S.issue(1)
assert not fin
stamp('p3 gemm')
PK = 80
for t in range(4):
    st = vr(SA + 2 * t, 2)
    for f in range(3):
        d = ACC + 12 * t + 4 * f
        for hh in range(2):
            op('v_pk_fma_f32 %s, %s, %s, %s op_sel:[0,0,0] op_sel_hi:[1,0,1]' % (
                vr(d + 2 * hh, 2), vr(CS3 + 4 * f + 2 * hh, 2), st, vr(d + 2 * hh, 2)))
    for f in range(3):
        d = ACC + 12 * t + 4 * f
        for hh in range(2):
            op('v_pk_mul_f32 %s, %s, %s op_sel:[0,1] op_sel_hi:[1,1]' % (vr(d + 2 * hh, 2), vr(d + 2 * hh, 2), st))
    for x in range(6):
        d = ACC + 12 * t + 2 * x
        op('v_cvt_pk_bf16_f32 v%d, v%d, v%d' % (PK + 6 * t + x, d, d + 1))
    for x in range(6):
        op('v_pk_max_i16 v%d, v%d, 0' % (PK + 6 * t + x, PK + 6 * t + x))
    if t & 1:
        b = PK + 6 * (t - 1)
        for x in range(6):
            op('v_permlane16_swap_b32 v%d, v%d' % (b + x, b + 6 + x))
        for x in range(3):
            q = op('buffer_store_dwordx4 %s, v%d, %s, %s offen offset:%d sc1' % (
                vr(b + 4 * x, 4), vAs, srd(S_A), ('0' if t == 1 else 's%d' % sC98), 256 * x))
stamp('p3')
S.pump(IDX_END)
post(3, q)
S.pump(IDX_END)
S.consume_upto(IDX_END)

wait_flags(3)
stamp('flag3')
loads = []
for tau in (1, 2, 3, 0):
    for t in range(11):
        def ld(tau=tau, t=t):
            so = sTA[tau]
            if t >= 2:
                op('s_cmp_ge_u32 s%d, %d' % (sQ, (11 - t + 2) // 3))
                op('s_cselect_b32 s%d, 11264, 0' % sOff)
                op('s_sub_u32 s%d, s%d, s%d' % (sOff, sTA[tau], sOff))
                op('s_add_u32 s%d, s%d, %d' % (sOff, sOff, t * 1024))
                so = sOff
            op('buffer_load_dwordx4 %s, v%d, %s, s%d offen offset:%d sc1' % (
                ar(64 + 44 * tau + 4 * t, 4), vAf, srd(S_A), so, t * 1024 if t < 2 else 0))
        loads.append(ld)


def w2frag(t, f):
    return ar(16 * t + 4 * f, 4) if t < 4 else vr(124 + 16 * (t - 4) + 4 * f, 4)


def p4_final():
    op('buffer_store_dwordx4 %s, v%d, %s, 0 offen' % (vr(HT, 4), vHs, srd(S_OUT)))
    return op('buffer_store_dwordx4 %s, v%d, %s, 0 offen offset:64' % (vr(HT + 4, 4), vHs, srd(S_OUT)))


ksplit_phase(11, lambda tau, t: ar(64 + 44 * tau + 4 * t, 4), w2frag, loads, 124, p4_final, lambda: None, lambda: None, cfg('UP4', 16))
stamp('end')
if STAMPS and cfg('DS', 0):
    g.raw('    s_waitcnt lgkmcnt(0)')
    op('s_mov_b64 exec, 1')
    lst = [(96, 1), (96, 0), (stamp_regs[0], 1)] + [(stamp_regs[n], 0) for n in range(0, 13) if n != 9]
    for n, (r, inv) in enumerate(lst):
        op(('v_not_b32 v%d, s%d' if inv else 'v_mov_b32 v%d, s%d') % (32 + n, r))
        op('buffer_atomic_umax v%d, off, %s, 0 offset:%d sc1' % (32 + n, srd(S_DBG), 4 + 4 * n))
elif STAMPS:
    g.raw('    s_waitcnt lgkmcnt(0)')
    op('s_lshl_b32 s%d, s2, 2' % sT0)
    op('s_add_u32 s%d, s%d, s%d' % (sT0, sT0, sW))
    op('s_lshl_b32 s%d, s%d, 6' % (sT0, sT0))
    op('s_mov_b64 exec, 1')
    for n in range(stamp_n[0]):
        op('v_mov_b32 v%d, s%d' % (32 + n, stamp_regs[n]))
        op('buffer_store_dword v%d, off, %s, s%d offset:%d' % (32 + n, srd(S_TS), sT0, 4 * n))
g.raw('END:')
g.raw('    s_endpgm')
g.raw('.section .rodata,"a"')
g.raw('.p2align 6')
g.raw('.amdhsa_kernel ' + NAME)
g.raw('  .amdhsa_next_free_vgpr 512')
g.raw('  .amdhsa_next_free_sgpr 102')
g.raw('  .amdhsa_accum_offset 256')
g.raw('  .amdhsa_group_segment_fixed_size 0')
g.raw('  .amdhsa_kernarg_size 72')
g.raw('  .amdhsa_user_sgpr_count 2')
g.raw('  .amdhsa_user_sgpr_kernarg_segment_ptr 1')
g.raw('  .amdhsa_system_sgpr_workgroup_id_x 1')
g.raw('.end_amdhsa_kernel')
txt = g.text()
if cfg('PL', 0) or cfg('PS', 0):
    L = []
    for ln in txt.split('\n'):
        if cfg('PL', 0) and 'buffer_load_dwordx4' in ln and ln.endswith(' sc1'):
            ln = ln[:-4]
        if cfg('PS', 0) and 'buffer_store_dwordx4' in ln and ln.endswith(' sc1'):
            ln = ln[:-4]
        L.append(ln)
    txt = '\n'.join(L)
open(OUT, 'w').write(txt)
print('instructions', g.ninstr, 'nops', g.nops, 'slots issued', S.ni, 'consumed', S.nc)
```
